```python
import torch

def _softmax(x, axis=-1):
    return torch.softmax(x, dim=axis)
def _gelu(x):
    return torch.nn.functional.gelu(x, approximate="tanh")
def _silu(x):
    return torch.nn.functional.silu(x)
def _sigmoid(x):
    return torch.sigmoid(x)
def _layernorm(x, axis=-1, eps=1e-5):
    m = x.mean(dim=axis, keepdim=True)
    v = x.var(dim=axis, keepdim=True, unbiased=False)
    return (x - m) / torch.sqrt(v + eps)
def _scatter_add(tgt, idx, src, axis=0):
    return tgt.clone().index_add_(axis, idx, src)
def _segment_sum(src, seg, n):
    out = torch.zeros((n,) + src.shape[1:], dtype=src.dtype)
    return out.index_add_(0, seg, src)
def _pad(x, pw):
    flat = tuple(v for pair in reversed(pw) for v in pair)
    return torch.nn.functional.pad(x, flat)

kernel_name = 'interleave_layers__linear_attn_block__sliding_block__prompt'

def setup_inputs():

    _w = (lambda a: (lambda t: t.to(torch.bfloat16) if t.is_floating_point() else t)(torch.as_tensor(a)))
    def _A_setup():
        B, S, D = 1, 2048, 640
        return {
            "x": _w((lambda *s: torch.randn(*s, dtype=torch.bfloat16) * 0.05)(B, S, D)),
            "wqkv": _w((lambda *s: torch.randn(*s, dtype=torch.bfloat16) * 0.05)(D, 3 * D)),
            "wo": _w((lambda *s: torch.randn(*s, dtype=torch.bfloat16) * 0.05)(D, D)),
        }
    _A_in = _A_setup()

    def _B_setup():
        B, S, D = 1, 2048, 640
        return {
            "x": _w((lambda *s: torch.randn(*s, dtype=torch.bfloat16) * 0.05)(B, S, D)),
            "wqkv": _w((lambda *s: torch.randn(*s, dtype=torch.bfloat16) * 0.05)(D, 3 * D)),
            "wo": _w((lambda *s: torch.randn(*s, dtype=torch.bfloat16) * 0.1)(D, D)),
        }
    _B_in = _B_setup()

    return {
        "A_x": _A_in["x"],
        "A_wqkv": _A_in["wqkv"],
        "A_wo": _A_in["wo"],
        "B_x": _B_in["x"],
        "B_wqkv": _B_in["wqkv"],
        "B_wo": _B_in["wo"],
    }

def reference(A_x, A_wqkv, A_wo, B_x, B_wqkv, B_wo):
    def _A_ref(x, wqkv, wo):
        B, S, D = x.shape
        H = 32; Dh = D // H
        qkv = (lambda x, *d: x.permute(*d))((x @ wqkv).reshape(B, S, 3, H, Dh), 2, 0, 3, 1, 4)
        q, k, v = qkv[0], qkv[1], qkv[2]
        phi = lambda t: torch.where(t > 0, t + 1, torch.exp(t)) + 1e-6
        pq, pk = phi(q), phi(k)
        kv = torch.einsum("bhsd,bhse->bhde", pk, v)
        z = torch.einsum("bhsd->bhd", pk)
        num = torch.einsum("bhqd,bhde->bhqe", pq, kv)
        den = torch.einsum("bhqd,bhd->bhq", pq, z)[..., None] + 1e-6
        o = num / den
        return (lambda x, *d: x.permute(*d))(o, 0, 2, 1, 3).reshape(B, S, D) @ wo

    def _B_ref(x, wqkv, wo):
        B, S, D = x.shape
        H = 32; Dh = D // H; W = 256
        qkv = (lambda x, *d: x.permute(*d))((x @ wqkv).reshape(B, S, 3, H, Dh), 2, 0, 3, 1, 4)
        q, k, v = qkv[0], qkv[1], qkv[2]
        scores = torch.einsum("bhqd,bhkd->bhqk", q, k) * (Dh ** -0.5)
        idx = torch.arange(S)
        mask = (idx[:, None] - idx[None, :] >= 0) & (idx[:, None] - idx[None, :] < W)
        scores = torch.where(mask[None, None], scores, -1e9)
        p = _softmax(scores, axis=-1)
        o = torch.einsum("bhqk,bhkd->bhqd", p, v)
        return (lambda x, *d: x.permute(*d))(o, 0, 2, 1, 3).reshape(B, S, D) @ wo

    x = A_x
    x = x + _A_ref(_layernorm(x, axis=-1), A_wqkv, A_wo)
    x = x + _B_ref(_layernorm(x, axis=-1), B_wqkv, B_wo)
    x = x + _A_ref(_layernorm(x, axis=-1), A_wqkv, A_wo)
    x = x + _B_ref(_layernorm(x, axis=-1), B_wqkv, B_wo)
    return x
```

```python
import re

TRANS = ('v_exp_f32', 'v_log_f32', 'v_rcp_f32', 'v_rsq_f32', 'v_sqrt_f32', 'v_sin_f32', 'v_cos_f32')

_reg = re.compile(r'^(-|\|)?([vas])(\d+)\|?$')
_rng = re.compile(r'^(-)?([vas])\[(\d+):(\d+)\]$')


def regs_of(tok):
    tok = tok.strip()
    m = _reg.match(tok)
    if m:
        return [(m.group(2), int(m.group(3)))]
    m = _rng.match(tok)
    if m:
        return [(m.group(2), i) for i in range(int(m.group(3)), int(m.group(4)) + 1)]
    if tok == 'vcc':
        return [('s', 106), ('s', 107)]
    if tok == 'exec':
        return [('s', 126), ('s', 127)]
    if tok == 'm0':
        return [('s', 124)]
    return []


class Ins:
    __slots__ = ('text', 'mn', 'ops', 'mods', 'dst', 'src', 'kind', 'srcC', 'srcAB', 'line')

    def __init__(self, text):
        self.text = text
        t = text.split(';')[0].strip()
        parts = t.split(None, 1)
        self.mn = parts[0]
        rest = parts[1] if len(parts) > 1 else ''
        ops = []
        cur = ''
        depth = 0
        for ch in rest:
            if ch in '[(':
                depth += 1
            if ch in '])':
                depth -= 1
            if ch == ',' and depth == 0:
                ops.append(cur.strip())
                cur = ''
            else:
                cur += ch
        if cur.strip():
            ops.append(cur.strip())
        mods = ''
        if ops:
            last = ops[-1].split(None, 1)
            if len(last) > 1:
                ops[-1] = last[0]
                mods = last[1]
        self.ops = ops
        self.mods = mods
        self.classify()

    def classify(self):
        mn = self.mn
        ops = self.ops
        R = lambda i: regs_of(ops[i]) if i < len(ops) else []
        allr = lambda a: [r for i in range(a, len(ops)) for r in regs_of(ops[i])]
        self.srcC = []
        self.srcAB = []
        dst, src = [], []
        base = mn.replace('_e32', '').replace('_e64', '').replace('_dpp', '')
        if mn.startswith('v_mfma'):
            kind = 'mfma'
            dst = R(0)
            self.srcAB = R(1) + R(2)
            self.srcC = R(3)
            src = self.srcAB + self.srcC
        elif mn.startswith('v_'):
            kind = 'valu'
            if base in TRANS:
                kind = 'trans'
            if mn.startswith('v_cmp'):
                dst = R(0)
                src = allr(1)
            elif mn.startswith('v_permlane') and 'swap' in mn:
                dst = R(0) + R(1)
                src = R(0) + R(1)
                kind = 'permlane'
            elif mn.startswith('v_readfirstlane') or mn.startswith('v_readlane'):
                dst = R(0)
                src = allr(1)
                kind = 'readlane'
            elif base in ('v_add_co_u32', 'v_sub_co_u32'):
                dst = R(0) + R(1)
                src = allr(2)
            elif base in ('v_addc_co_u32',):
                dst = R(0) + R(1)
                src = allr(2)
            elif base in ('v_fmac_f32', 'v_dot2c_f32_bf16', 'v_pk_fmac_f16'):
                dst = R(0)
                src = allr(0)
            else:
                dst = R(0)
                src = allr(1)
                if base == 'v_cndmask_b32' and len(ops) == 3:
                    src += regs_of('vcc')
            if 'dpp' in mn or 'row_' in self.mods or 'quad_perm' in self.mods:
                kind = 'dpp'
                src = src + dst
        elif mn.startswith('ds_'):
            kind = 'ds'
            if mn.startswith('ds_read') or mn.startswith('ds_bpermute') or mn.startswith('ds_swizzle') or 'rtn' in mn:
                dst = R(0)
                src = allr(1)
            else:
                src = allr(0)
        elif mn.startswith('buffer_') or mn.startswith('global_'):
            kind = 'vmem'
            words = self.mods.split()
            if mn in ('buffer_inv', 'buffer_wbl2'):
                pass
            elif 'lds' in words or '_lds_' in mn:
                src = allr(0) + regs_of('m0')
                kind = 'dma'
            elif '_load' in mn:
                dst = R(0)
                src = allr(1)
            elif 'atomic' in mn:
                src = allr(0)
                if 'sc0' in words:
                    dst = R(0)
            else:
                src = allr(0)
        elif mn.startswith('s_'):
            kind = 'salu'
            if mn.startswith('s_load') or mn.startswith('s_memtime') or mn.startswith('s_memrealtime'):
                kind = 'smem'
                dst = R(0)
                src = allr(1)
            elif mn.startswith('s_cmp') or mn.startswith('s_bitcmp') or mn in (
                    's_waitcnt', 's_barrier', 's_nop', 's_branch', 's_endpgm', 's_sleep', 's_setprio') or mn.startswith('s_cbranch'):
                src = allr(0)
            elif 'saveexec' in mn:
                dst = R(0) + regs_of('exec')
                src = allr(1) + regs_of('exec')
            else:
                dst = R(0)
                src = allr(1)
                if mn in ('s_addk_i32', 's_mulk_i32'):
                    src += R(0)
        else:
            raise ValueError('unknown instr: ' + self.text)
        self.kind = kind
        self.dst = set(dst)
        self.src = set(src)

    def is_valu(self):
        return self.kind in ('valu', 'trans', 'permlane', 'readlane', 'dpp')

    def store_data(self):
        mn = self.mn
        if self.kind == 'vmem' and ('store_dwordx4' in mn or 'store_dwordx3' in mn):
            if mn.startswith('buffer_'):
                return set(regs_of(self.ops[0]))
            return set(regs_of(self.ops[1]))
        return set()


def vonly(s):
    return set(r for r in s if r[0] in 'va')


def sonly(s):
    return set(r for r in s if r[0] == 's')


class Asm:
    def __init__(self, check=True):
        self.lines = []
        self.uid = 0
        self.check = check

    def e(self, text):
        for ln in text.strip().split('\n'):
            ln = ln.strip()
            if not ln or ln.startswith(';'):
                if ln:
                    self.lines.append(('raw', '  ' + ln))
                continue
            if ln.endswith(':'):
                self.lines.append(('label', ln[:-1]))
                continue
            self.lines.append(('ins', Ins(ln)))

    __call__ = e

    def raw(self, text):
        self.lines.append(('raw', text))

    def label(self, name):
        self.lines.append(('label', name))

    def newlabel(self, stem):
        self.uid += 1
        return 'L_%s_%d' % (stem, self.uid)

    def comment(self, t):
        self.lines.append(('raw', '  ; ' + t))

    @staticmethod
    def need(prev, cur):
        n = 0
        pd = prev.dst
        if prev.kind == 'mfma':
            D = pd
            if cur.kind == 'mfma':
                if D & set(cur.srcAB):
                    n = max(n, 8)
                if D & set(cur.srcC):
                    if set(cur.srcC) != D:
                        n = max(n, 6)
                if D & cur.dst and set(cur.srcC) != D:
                    n = max(n, 6)
            elif cur.is_valu():
                if D & (cur.src | cur.dst):
                    n = max(n, 8)
                if set(prev.srcC) & cur.dst:
                    n = max(n, 3)
            elif cur.kind in ('vmem', 'dma', 'ds'):
                if D & (cur.src | cur.dst):
                    n = max(n, 8)
        if prev.mn.startswith('v_dot'):
            if cur.mn == prev.mn:
                ab = set(regs_of(cur.ops[1]) + regs_of(cur.ops[2]))
                if pd & ab:
                    n = max(n, 3)
            elif pd & (cur.src | cur.dst):
                n = max(n, 3)
        if prev.is_valu():
            vd = vonly(pd)
            sd = sonly(pd)
            if cur.kind == 'mfma' and vd & cur.src:
                n = max(n, 2)
            if prev.kind == 'trans' and cur.is_valu() and cur.kind != 'trans' and vd & cur.src:
                n = max(n, 1)
            if cur.kind in ('permlane', 'dpp') and vd & cur.src:
                n = max(n, 2)
            if cur.kind == 'readlane' and vd & cur.src:
                n = max(n, 1)
            if sd:
                if cur.is_valu() and sd & cur.src:
                    n = max(n, 4 if cur.kind == 'readlane' else 2)
                if cur.kind in ('vmem', 'dma') and sd & cur.src:
                    n = max(n, 5)
                if cur.kind in ('salu', 'smem') and sd & cur.src:
                    n = max(n, 1)
        sdat = prev.store_data()
        if sdat:
            if cur.is_valu() and sdat & cur.dst:
                n = max(n, 2)
            elif sdat & cur.dst:
                n = max(n, 1)
        if prev.kind == 'salu' and ('s', 124) in pd and cur.kind == 'dma':
            n = max(n, 1)
        return n

    def finalize(self):
        out = []
        hist = []
        vm = []
        lg = []
        problems = []
        for kind, x in self.lines:
            if kind == 'raw':
                out.append(x)
                continue
            if kind == 'label':
                out.append(x + ':')
                continue
            ins = x
            req = 0
            dist = 0
            for p, st in reversed(hist):
                if dist >= 12:
                    break
                if p is not None:
                    nd = self.need(p, ins)
                    if nd - dist > req:
                        req = nd - dist
                dist += st
            if req > 0:
                out.append('  s_nop %d' % (req - 1))
                hist.append((None, req))
            out.append('  ' + ins.text)
            if ins.mn == 's_nop':
                hist.append((None, int(ins.ops[0], 0) + 1))
            else:
                hist.append((ins, 1))
            if len(hist) > 40:
                hist = hist[-24:]
            if self.check:
                if ins.mn == 's_waitcnt':
                    t = ins.text
                    m = re.search(r'vmcnt\((\d+)\)', t)
                    if m:
                        k = int(m.group(1))
                        if len(vm) > k:
                            vm = vm[len(vm) - k:] if k else []
                    m = re.search(r'lgkmcnt\((\d+)\)', t)
                    if m:
                        k = int(m.group(1))
                        if len(lg) > k:
                            lg = lg[len(lg) - k:] if k else []
                elif ins.mn in ('s_endpgm',):
                    vm = []
                    lg = []
                else:
                    touched = ins.src | ins.dst
                    for lst, nm in ((vm, 'vm'), (lg, 'lgkm')):
                        for d, txt in lst:
                            if d & touched and not (ins.kind in ('vmem', 'ds') and not (d & ins.src)):
                                problems.append('%s pending [%s] touched by [%s]' % (nm, txt, ins.text))
                    if ins.kind in ('vmem', 'dma'):
                        vm.append((set(ins.dst), ins.text))
                    elif ins.kind == 'ds':
                        lg.append((set(ins.dst), ins.text))
                    elif ins.kind == 'smem':
                        lg.append((set(ins.dst), ins.text))
                        lg.append((set(), ins.text))
        return '\n'.join(out) + '\n', problems


def vr(b, n=1):
    return 'v%d' % b if n == 1 else 'v[%d:%d]' % (b, b + n - 1)


def ar(b, n=1):
    return 'a%d' % b if n == 1 else 'a[%d:%d]' % (b, b + n - 1)


def sr(b, n=1):
    return 's%d' % b if n == 1 else 's[%d:%d]' % (b, b + n - 1)
```

```python
from asmlib import *
from layout import *

PADROW = 1312


def gen_k0(a, name='prep_kernel', stflag=''):
    e = a.e
    a.raw('.globl %s' % name)
    a.raw('.p2align 8')
    a.raw('.type %s,@function' % name)
    a.label(name)
    L_end = 'K0_end'
    e('s_cmp_ge_u32 s2, 256')
    e('s_cbranch_scc1 %s' % L_end)
    e('s_load_dwordx2 s[4:5], s[0:1], 64')
    e('s_load_dwordx4 s[16:19], s[0:1], 0')
    e('s_load_dwordx2 s[20:21], s[0:1], 16')
    e('s_load_dwordx4 s[24:27], s[0:1], 32')
    e('v_and_b32 v1, 63, v0')
    e('v_lshrrev_b32 v2, 6, v0')
    e('s_nop 0')
    e('v_readfirstlane_b32 s3, v2')
    e('s_waitcnt lgkmcnt(0)')
    e('s_mov_b32 s12, s4')
    e('s_and_b32 s13, s5, 0xffff')
    e('s_mov_b32 s14, %d' % WS_USED)
    e('s_mov_b32 s15, 0x20000')
    e('s_cmp_ge_u32 s2, 192')
    e('s_cbranch_scc1 K0_zero')
    e('s_cmp_ge_u32 s2, 160')
    e('s_cbranch_scc1 K0_x')
    e('s_cmp_ge_u32 s2, 120')
    e('s_cbranch_scc1 K0_wo_setup')

    e('s_cmp_ge_u32 s2, 60')
    e('s_cselect_b32 s30, 1, 0')
    e('s_mul_i32 s31, s30, 60')
    e('s_sub_u32 s31, s2, s31')
    e('s_mul_i32 s32, s31, 86')
    e('s_lshr_b32 s32, s32, 8')
    e('s_mul_i32 s33, s32, 3')
    e('s_sub_u32 s33, s31, s33')
    e('s_cmp_eq_u32 s30, 0')
    e('s_cselect_b32 s8, s18, s24')
    e('s_cselect_b32 s9, s19, s25')
    e('s_and_b32 s9, s9, 0xffff')
    e('s_mov_b32 s10, %d' % (640 * 3840))
    e('s_mov_b32 s11, 0x20000')
    e('s_mov_b32 s34, 3840')
    e('s_mul_i32 s35, s33, 1280')
    e('s_mov_b32 s36, 0')
    e('s_lshr_b32 s37, s32, 1')
    e('s_mul_i32 s37, s37, 10')
    e('s_and_b32 s38, s32, 1')
    e('s_lshl_b32 s38, s38, 2')
    e('s_add_u32 s37, s37, s38')
    e('s_add_u32 s37, s37, s3')
    e('s_sub_u32 s38, s32, 16')
    e('s_mul_i32 s38, s38, 20')
    e('s_lshr_b32 s39, s3, 1')
    e('s_mul_i32 s39, s39, 10')
    e('s_add_u32 s38, s38, s39')
    e('s_and_b32 s39, s3, 1')
    e('s_add_u32 s38, s38, s39')
    e('s_add_u32 s38, s38, 8')
    e('s_cmp_lt_u32 s32, 16')
    e('s_cselect_b32 s37, s37, s38')
    e('s_lshl_b32 s37, s37, 3')
    e('s_mov_b32 s40, 0')
    e('s_branch K0_load')

    a.label('K0_wo_setup')
    e('s_sub_u32 s31, s2, 120')
    e('s_cmp_ge_u32 s31, 20')
    e('s_cselect_b32 s30, 1, 0')
    e('s_mul_i32 s32, s30, 20')
    e('s_sub_u32 s32, s31, s32')
    e('s_cmp_eq_u32 s30, 0')
    e('s_cselect_b32 s8, s20, s26')
    e('s_cselect_b32 s9, s21, s27')
    e('s_and_b32 s9, s9, 0xffff')
    e('s_mov_b32 s10, %d' % (640 * 1280))
    e('s_mov_b32 s11, 0x20000')
    e('s_mov_b32 s34, 1280')
    e('s_mov_b32 s35, 0')
    e('s_mov_b32 s36, 16')
    e('s_mul_i32 s37, s32, 40')
    e('s_lshl_b32 s38, s3, 2')
    e('s_add_u32 s37, s37, s38')
    e('s_sub_u32 s38, s32, 16')
    e('s_lshl_b32 s38, s38, 2')
    e('s_add_u32 s38, s38, s3')
    e('s_mul_i32 s38, s38, 40')
    e('s_add_u32 s38, s38, 16')
    e('s_cmp_lt_u32 s32, 16')
    e('s_cselect_b32 s37, s37, s38')
    e('s_mov_b32 s40, 1')

    a.label('K0_load')
    e('s_mul_i32 s41, s3, %d' % (8 * PADROW))
    for i in range(10):
        e('v_add_u32 v2, %d, v1' % (64 * i))
        e('v_mul_u32_u24 v3, 205, v2')
        e('v_lshrrev_b32 v3, 14, v3')
        e('v_mul_u32_u24 v4, 80, v3')
        e('v_sub_u32 v4, v2, v4')
        e('v_lshlrev_b32 v4, 4, v4')
        e('v_cmp_le_u32 vcc, 4, v3')
        e('v_mov_b32 v6, s36')
        e('v_cndmask_b32_e64 v5, 0, v6, vcc')
        e('v_add3_u32 v5, v5, v3, s37')
        e('v_mul_lo_u32 v5, v5, s34')
        e('v_add3_u32 v5, v5, v4, s35')
        e('buffer_load_dwordx4 %s, v5, s[8:11], 0 offen' % vr(40 + 4 * i, 4))
        e('v_mul_u32_u24 v3, %d, v3' % PADROW)
        e('v_add3_u32 %s, v3, v4, s41' % vr(20 + i))
    for i in range(10):
        e('s_waitcnt vmcnt(%d)' % (9 - i))
        e('ds_write_b128 %s, %s' % (vr(20 + i), vr(40 + 4 * i, 4)))
    e('s_waitcnt lgkmcnt(0)')
    e('s_barrier')
    e('v_lshrrev_b32 v2, 4, v1')
    e('v_and_b32 v3, 15, v1')
    e('v_lshrrev_b32 v4, 2, v3')
    e('v_and_b32 v5, 3, v1')
    e('v_lshl_add_u32 v6, v2, 3, v4')
    e('v_mul_u32_u24 v6, %d, v6' % PADROW)
    e('s_mul_i32 s42, s3, 320')
    e('v_add_u32 v6, s42, v6')
    e('v_lshlrev_b32 v7, 4, v1')
    e('v_mov_b32 v8, 0x3f803f80')
    e('v_mov_b32 v9, v8')
    e('v_mov_b32 v10, v8')
    e('v_mov_b32 v11, v8')
    e('s_cmp_eq_u32 s40, 1')
    e('s_cbranch_scc1 K0_wo_out')

    e('s_mul_i32 s43, s30, 3')
    e('s_add_u32 s43, s43, s33')
    e('s_mul_i32 s50, s32, 5120')
    e('s_mul_i32 s51, s32, 2560')
    e('s_add_u32 s51, s51, 102400')
    e('s_mul_i32 s52, s32, 5632')
    e('s_lshl_b32 s53, s32, 11')
    e('s_add_u32 s53, s53, 112640')
    cases = {
        0: ('s51', 0, 's51', 1024, 's51', 2048, (5, 6, 7), 2),
        1: ('s50', 0, 's50', 1024, 's50', 4096, (0, 1, 4), 0),
        2: ('s50', 2048, 's50', 3072, 's50', 4096, (2, 3, 4), 1),
        3: ('s53', 0, 's53', 1024, 's52', 2048, (6, 7, 2), 1),
        4: ('s52', 0, 's52', 1024, 's52', 2048, (0, 1, 2), 0),
        5: ('s52', 3072, 's52', 4096, 's52', 5120, (3, 4, 5), 2),
    }
    for cs_, (ba, oa, bb, ob, bc, oc, tl, mode) in cases.items():
        lab = 'K0_case%d_done' % cs_
        e('s_cmp_lg_u32 s43, %d' % cs_)
        e('s_cbranch_scc1 %s' % lab)
        e('s_add_u32 s44, %s, %d' % (ba, oa))
        e('s_add_u32 s45, %s, %d' % (bb, ob))
        e('s_add_u32 s46, %s, %d' % (bc, oc))
        e('s_mov_b32 s47, %d' % (tl[0] * 64))
        e('s_mov_b32 s48, %d' % (tl[1] * 64))
        e('s_mov_b32 s49, %d' % (tl[2] * 64))
        e('s_mov_b32 s54, %d' % mode)
        a.label(lab)
    e('v_cmp_gt_u32 s[56:57], 8, v3')
    e('s_not_b64 s[60:61], s[56:57]')
    e('s_cmp_eq_u32 s54, 1')
    e('s_cselect_b64 s[58:59], s[60:61], s[56:57]')
    e('v_lshlrev_b32 v12, 7, v2')
    e('v_lshl_add_u32 v12, v3, 4, v12')
    e('s_cmp_eq_u32 s54, 2')
    e('s_cselect_b64 s[62:63], -1, 0')
    e('v_cndmask_b32_e64 v12, v7, v12, s[62:63]')
    e('v_lshl_add_u32 v13, v5, 3, v6')
    e('v_and_b32 v14, 1, v5')
    e('v_mul_u32_u24 v14, 40, v14')
    e('v_add3_u32 v14, v14, v6, 32')
    e('s_mul_i32 s64, s30, %d' % (OFF_WB - OFF_WA))
    e('s_mul_i32 s65, s3, %d' % (4 * WTILE))
    e('s_add_u32 s64, s64, s65')
    e('s_mul_i32 s66, s30, %d' % CS_M)
    e('s_lshl_b32 s67, s32, 13')
    e('s_add_u32 s66, s66, s67')
    e('s_lshl_b32 s67, s3, 11')
    e('s_add_u32 s66, s66, s67')
    e('s_add_u32 s66, s66, %d' % OFF_CS)
    e('v_lshlrev_b32 v15, 2, v3')
    D0 = 40
    for pp in range(4):
        for it, (addr, off) in enumerate((('v13', 80 * pp), ('v13', 80 * pp + 40), ('v14', 80 * pp))):
            d = D0 + (pp * 3 + it) * 4
            e('ds_read_b64_tr_b16 %s, %s offset:%d' % (vr(d, 2), addr, off))
            e('ds_read_b64_tr_b16 %s, %s offset:%d' % (vr(d + 2, 2), addr, off + 4 * PADROW))
    e('s_waitcnt lgkmcnt(0)')
    C0 = 100
    for n in range(12):
        e('v_mfma_f32_16x16x32_bf16 %s, v[8:11], %s, 0' % (vr(C0 + 4 * n, 4), vr(D0 + 4 * n, 4)))
    for pp in range(4):
        e('s_add_u32 s68, s64, %d' % (pp * WTILE))
        for it, sd in enumerate(('s44', 's45', 's46')):
            d = D0 + (pp * 3 + it) * 4
            e('s_add_u32 s69, s68, %s' % sd)
            if it < 2:
                e('buffer_store_dwordx4 %s, v7, s[12:15], s69 offen %s' % (vr(d, 4), stflag))
            else:
                e('s_mov_b64 exec, s[58:59]')
                e('buffer_store_dwordx4 %s, v12, s[12:15], s69 offen %s' % (vr(d, 4), stflag))
                e('s_mov_b64 exec, -1')
    e('s_mov_b64 s[70:71], 0xffff')
    e('s_and_b64 s[72:73], s[70:71], s[58:59]')
    for pp in range(4):
        for it, st in enumerate(('s47', 's48', 's49')):
            c = C0 + (pp * 3 + it) * 4
            e('s_add_u32 s69, s66, %d' % (pp * 512))
            e('s_add_u32 s69, s69, %s' % st)
            e('s_mov_b64 exec, %s' % ('s[70:71]' if it < 2 else 's[72:73]'))
            e('buffer_store_dword %s, v15, s[12:15], s69 offen %s' % (vr(c), stflag))
    e('s_mov_b64 exec, -1')
    e('s_branch %s' % L_end)

    a.label('K0_wo_out')
    e('v_lshl_add_u32 v13, v5, 4, v6')
    e('v_lshl_add_u32 v14, v5, 3, v6')
    e('s_mul_i32 s64, s30, %d' % (OFF_WOB - OFF_WOA))
    e('s_mul_i32 s65, s3, %d' % (2 * WOTILE))
    e('s_add_u32 s64, s64, s65')
    e('s_mul_i32 s65, s32, 5120')
    e('s_add_u32 s64, s64, s65')
    e('s_add_u32 s64, s64, %d' % OFF_WOA)
    for cc in range(2):
        for ft, (addr, off) in enumerate((('v13', 0), ('v13', 8), ('v13', 64), ('v13', 72), ('v14', 128))):
            d = D0 + (cc * 5 + ft) * 4
            o = off + 160 * cc
            e('ds_read_b64_tr_b16 %s, %s offset:%d' % (vr(d, 2), addr, o))
            e('ds_read_b64_tr_b16 %s, %s offset:%d' % (vr(d + 2, 2), addr, o + 4 * PADROW))
    e('s_waitcnt lgkmcnt(0)')
    for cc in range(2):
        for ft in range(5):
            d = D0 + (cc * 5 + ft) * 4
            e('s_add_u32 s69, s64, %d' % (cc * WOTILE + ft * 1024))
            e('buffer_store_dwordx4 %s, v7, s[12:15], s69 offen %s' % (vr(d, 4), stflag))
    e('s_branch %s' % L_end)

    a.label('K0_x')
    e('s_mov_b32 s8, s16')
    e('s_and_b32 s9, s17, 0xffff')
    e('s_mov_b32 s10, %d' % FMSZ)
    e('s_mov_b32 s11, 0x20000')
    e('s_sub_u32 s30, s2, 160')
    e('s_lshl_b32 s30, s30, 2')
    e('s_add_u32 s30, s30, s3')
    e('v_and_b32 v3, 15, v1')
    e('v_lshrrev_b32 v2, 4, v1')
    e('s_mul_i32 s31, s30, %d' % (16 * 1280))
    e('v_mul_u32_u24 v4, 1280, v3')
    e('v_add_u32 v4, s31, v4')
    e('v_lshl_add_u32 v5, v2, 4, v4')
    e('v_lshrrev_b32 v6, 1, v2')
    e('v_mul_u32_u24 v6, 160, v6')
    e('v_and_b32 v7, 1, v2')
    e('v_lshlrev_b32 v7, 4, v7')
    e('v_add3_u32 v6, v6, v7, v4')
    e('v_add_u32 v6, 128, v6')
    X0 = 20
    for ks in range(20):
        if ks < 16:
            e('buffer_load_dwordx4 %s, v5, s[8:11], 0 offen offset:%d' % (vr(X0 + 4 * ks, 4), (10 * (ks >> 1) + 4 * (ks & 1)) * 16))
        else:
            e('buffer_load_dwordx4 %s, v6, s[8:11], 0 offen offset:%d' % (vr(X0 + 4 * ks, 4), 320 * (ks - 16)))
    e('v_lshlrev_b32 v7, 4, v1')
    e('s_mul_i32 s31, s30, %d' % (20 * 1024))
    e('s_add_u32 s31, s31, %d' % OFF_X)
    e('v_mov_b32 v8, 0x3f803f80')
    e('v_mov_b32 v9, 0')
    e('v_mov_b32 v10, 0')
    e('v_mov_b32 v11, 0')
    e('v_mov_b32 v12, 0')
    e('s_waitcnt vmcnt(0)')
    for ks in range(20):
        e('buffer_store_dwordx4 %s, v7, s[12:15], s31 offen %s' % (vr(X0 + 4 * ks, 4), stflag))
        e('s_add_u32 s31, s31, 1024')
    for n in range(80):
        acc_s = 'v9' if n & 1 else 'v10'
        acc_q = 'v11' if n & 1 else 'v12'
        e('v_dot2_f32_bf16 %s, %s, v8, %s' % (acc_s, vr(X0 + n), acc_s))
        e('v_dot2_f32_bf16 %s, %s, %s, %s' % (acc_q, vr(X0 + n), vr(X0 + n), acc_q))
    e('v_add_f32 v9, v9, v10')
    e('v_add_f32 v11, v11, v12')
    for (s_, t_) in (('v9', 'v10'), ('v11', 'v12')):
        e('v_mov_b32 %s, %s' % (t_, s_))
        e('v_permlane32_swap_b32 %s, %s' % (s_, t_))
        e('v_add_f32 %s, %s, %s' % (s_, s_, t_))
        e('v_mov_b32 %s, %s' % (t_, s_))
        e('v_permlane16_swap_b32 %s, %s' % (s_, t_))
        e('v_add_f32 %s, %s, %s' % (s_, s_, t_))
    e('v_cmp_eq_u32 s[40:41], 0, v2')
    e('v_mov_b32 v14, 0')
    e('v_mov_b32 v15, 0')
    e('v_cndmask_b32_e64 v12, 0, v9, s[40:41]')
    e('v_cndmask_b32_e64 v13, 0, v11, s[40:41]')
    e('v_lshlrev_b32 v4, 6, v3')
    e('v_lshl_add_u32 v4, v2, 4, v4')
    e('s_lshl_b32 s31, s30, 10')
    e('s_add_u32 s31, s31, %d' % OFF_ST)
    e('buffer_store_dwordx4 v[12:15], v4, s[12:15], s31 offen %s' % stflag)
    e('s_branch %s' % L_end)

    a.label('K0_zero')
    e('s_sub_u32 s30, s2, 192')
    e('s_mul_i32 s30, s30, 3840')
    e('s_add_u32 s30, s30, %d' % OFF_ZERO)
    e('v_lshlrev_b32 v4, 4, v0')
    e('v_mov_b32 v8, 0')
    e('v_mov_b32 v9, 0')
    e('v_mov_b32 v10, 0')
    e('v_mov_b32 v11, 0')
    e('v_cmp_gt_u32 vcc, 240, v0')
    e('s_and_saveexec_b64 s[40:41], vcc')
    e('s_cbranch_execz %s' % L_end)
    e('buffer_store_dwordx4 v[8:11], v4, s[12:15], s30 offen %s' % stflag)
    a.label(L_end)
    e('s_endpgm')


K0_LDS = 32 * PADROW
K0_DESC = '''.amdhsa_kernel prep_kernel
  .amdhsa_next_free_vgpr 160
  .amdhsa_next_free_sgpr 96
  .amdhsa_accum_offset 160
  .amdhsa_group_segment_fixed_size 0
  .amdhsa_kernarg_size 72
  .amdhsa_user_sgpr_count 2
  .amdhsa_user_sgpr_kernarg_segment_ptr 1
  .amdhsa_system_sgpr_workgroup_id_x 1
  .amdhsa_float_denorm_mode_32 3
.end_amdhsa_kernel
'''
```

```python
from asmlib import *
from layout import *
from kmain import *


def layer_b(M):
    a, e = M.a, M.e
    e('s_lshl_b32 s%d, s%d, 1' % (S_L, S_IT))
    e('s_add_u32 s%d, s%d, 1' % (S_L, S_L))
    e('s_mul_i32 s%d, s%d, %d' % (T4, S_P, WTILE))
    e('s_add_u32 s%d, s%d, %d' % (T4, T4, OFF_WB))
    M.dma_linear(150, T4, 0)
    M.wait_cnt(S_ROWC, 's%d' % S_ROWT)
    M.q_loads()
    M.gemm_pass(1, [0, 1, 2, 3, 4, 5], [0, 1, 2, 3, 4, 5], [1, 1, 1, 0, 0, 0], True)
    CS4 = V_T + 4
    CSN = V_T + 16
    M.read_cs_trans(1, [0, 1, 2], CS4)
    M.read_cs_normal(1, [3, 4, 5], CSN)
    SQ = V_T + 20
    FQ = V_T + 24
    e('v_mov_b32 v%d, 0x%x' % (FQ + 1, f2u(QSCALE)))
    e('v_cndmask_b32_e64 v%d, 1.0, v%d, %s' % (FQ, FQ + 1, S_HI))
    for tt in range(2):
        e('v_mul_f32 v%d, v%d, v%d' % (SQ + tt, V_SAT + tt, FQ))
        e('v_mul_f32 v%d, v%d, v%d' % (SQ + 2 + tt, V_SBT + tt, FQ))
    e('s_waitcnt lgkmcnt(0)')
    KF = V_T + 28
    ZQ = V_T + 44
    VFR = V_T + 48
    for tt in range(2):
        M.fold_trans(acc(0, tt), tt, CS4 + 0, None)
        M.fold_trans(acc(1, tt), tt, CS4 + 4, None)
        M.fold_trans(acc(2, tt), tt, CS4 + 8, None, sat=SQ, sbt=SQ + 2)
        k0 = KF + (tt * 2 + 0) * 4
        k1 = KF + (tt * 2 + 1) * 4
        M.pack4(k0, acc(0, tt))
        M.pack4(k1, acc(1, tt))
        M.pack4(k0 + 2, acc(2, tt))
        e('v_mov_b32 v%d, 0' % (ZQ + 2 * tt))
        e('v_mov_b32 v%d, 0' % (ZQ + 2 * tt + 1))
        e('v_permlane32_swap_b32 v%d, v%d' % (k0 + 2, ZQ + 2 * tt))
        e('v_permlane32_swap_b32 v%d, v%d' % (k0 + 3, ZQ + 2 * tt + 1))
        e('v_mov_b32 v%d, v%d' % (k1 + 2, k0 + 2))
        e('v_mov_b32 v%d, v%d' % (k1 + 3, k0 + 3))
    for tt in range(2):
        for n in range(3):
            M.fold_normal(acc(3 + n, tt), tt, CSN + n, None)
            M.pack4(VFR + 4 * n + 2 * tt, acc(3 + n, tt))
    e('v_mov_b32 v%d, 0x3f803f80' % FQ)
    for r in range(4):
        e('v_cndmask_b32_e64 v%d, v%d, v%d, %s' % (VFR + 8 + r, FQ, VFR + 8 + r, S_M8))
    e('s_mul_i32 s%d, s%d, %d' % (T0, S_IT, HALOSZ))
    e('s_lshl_b32 s%d, s%d, 4' % (T1, S_P))
    e('s_add_u32 s%d, s%d, s%d' % (T1, T1, S_R))
    e('s_mul_i32 s%d, s%d, %d' % (T1, T1, HALOBLK))
    e('s_add_u32 s%d, s%d, s%d' % (T0, T0, T1))
    e('s_add_u32 s68, s%d, %d' % (T0, OFF_HALO))
    e('s_lshl_b32 s%d, s%d, 12' % (T1, S_WAVE))
    e('s_add_u32 s%d, s68, s%d' % (T0, T1))
    for n in range(4):
        e('buffer_store_dwordx4 %s, v%d, %s, s%d offen offset:%d sc1' % (vr(KF + 4 * n, 4), V_L16, SRD_WS, T0, n * 1024))
    e('s_mul_i32 s%d, s%d, 3072' % (T2, S_WAVE))
    e('s_add_u32 s%d, s68, s%d' % (T0, T2))
    e('s_add_u32 s%d, s%d, 16384' % (T0, T0))
    for n in range(3):
        e('buffer_store_dwordx4 %s, v%d, %s, s%d offen offset:%d sc1' % (vr(VFR + 4 * n, 4), V_L16, SRD_WS, T0, n * 1024))
    e('s_barrier')
    e('v_add_u32 v%d, s%d, v%d' % (V_T, T1, V_L16))
    for n in range(4):
        e('ds_write_b128 v%d, %s offset:%d' % (V_T, vr(KF + 4 * n, 4), L_KF + 16 * 2048 + n * 1024))
    e('v_add_u32 v%d, s%d, v%d' % (V_T, T2, V_L16))
    for n in range(3):
        o = L_VF + 8 * 3072 + n * 1024
        assert o < 65536 + 16384
        v, imm = (V_T, o) if o < 65536 else (None, None)
        if v is None:
            e('v_add_u32 v%d, %d, v%d' % (V_T + 1, o, V_T))
            e('ds_write_b128 v%d, %s' % (V_T + 1, vr(VFR + 4 * n, 4)))
        else:
            e('ds_write_b128 v%d, %s offset:%d' % (v, vr(VFR + 4 * n, 4), imm))
    e('s_waitcnt vmcnt(0) lgkmcnt(0)')
    e('s_barrier')
    e('s_lshl_b32 s%d, s%d, 4' % (T0, S_IT))
    e('s_add_u32 s%d, s%d, s%d' % (T0, T0, S_P))
    e('s_lshl_b32 s%d, s%d, 7' % (T0, T0))
    e('s_add_u32 s69, s%d, %d' % (T0, OFF_CNT + CNT_KVF))
    lab = a.newlabel('kvflag')
    e('s_cmp_lg_u32 s%d, 0' % S_WAVE)
    e('s_cbranch_scc1 %s' % lab)
    e('v_mov_b32 v%d, 1' % V_T)
    e('s_lshl_b32 s%d, s%d, 2' % (T0, S_R))
    e('v_mov_b32 v%d, s%d' % (V_T + 1, T0))
    e('s_mov_b64 exec, 1')
    e('buffer_store_dword v%d, v%d, %s, s69 offen sc1' % (V_T, V_T + 1, SRD_WS))
    e('s_mov_b64 exec, -1')
    a.label(lab)
    M.gemm_pass(1, [6, 7], [0, 1], [1, 1], False)
    M.read_cs_trans(1, [6, 7], CS4)
    e('s_mov_b32 s%d, 0x%x' % (T0, f2u(QSCALE)))
    for tt in range(2):
        e('v_mul_f32 v%d, s%d, v%d' % (SQ + tt, T0, V_SAT + tt))
        e('v_mul_f32 v%d, s%d, v%d' % (SQ + 2 + tt, T0, V_SBT + tt))
    e('s_waitcnt lgkmcnt(0)')
    AQ = 160
    QT = V_T + 28
    CQ = V_T + 32
    e('v_cmp_eq_u32 %s, 3, v%d' % (S_W0, V_G))
    e('v_mov_b32 v%d, 0x3f80' % (CQ + 1))
    e('v_cndmask_b32_e64 v%d, 0, v%d, %s' % (CQ, CQ + 1, S_W0))
    for tt in range(2):
        for h in range(2):
            M.fold_trans(acc(h, tt), tt, CS4 + 4 * h, None, sat=SQ, sbt=SQ + 2)
            M.pack4(QT, acc(h, tt))
            msk = S_G1 if h else S_G0
            e('v_cndmask_b32_e64 v%d, v%d, v%d, %s' % (QT + 2, CQ, ZQ + 2 * tt, msk))
            e('v_cndmask_b32_e64 v%d, 0, v%d, %s' % (QT + 3, ZQ + 2 * tt + 1, msk))
            for k in range(4):
                e('v_accvgpr_write_b32 a%d, v%d' % (AQ + (tt * 2 + h) * 4 + k, QT + k))
    wl = a.newlabel('hw_loop')
    wo = a.newlabel('hw_out')
    e('s_cmp_lg_u32 s%d, 0' % S_WAVE)
    e('s_cbranch_scc1 %s' % wo)
    e('s_cmp_eq_u32 s%d, 0' % S_R)
    e('s_cbranch_scc1 %s' % wo)
    e('s_sub_u32 s%d, s%d, 1' % (T0, S_R))
    e('s_sub_u32 s%d, s%d, 2' % (T1, S_R))
    e('s_max_i32 s%d, s%d, 0' % (T1, T1))
    e('s_lshl_b32 s%d, s%d, 2' % (T0, T0))
    e('s_lshl_b32 s%d, s%d, 2' % (T1, T1))
    e('v_mov_b32 v%d, s%d' % (V_T + 1, T0))
    e('v_mov_b32 v%d, s%d' % (V_T + 2, T1))
    e('v_cmp_eq_u32 %s, 0, v%d' % (S_W0, V_LANE))
    e('v_cndmask_b32_e64 v%d, v%d, v%d, %s' % (V_T + 1, V_T + 2, V_T + 1, S_W0))
    e('s_mov_b32 s%d, 0' % T2)
    a.label(wl)
    e('buffer_load_dword v%d, v%d, %s, s69 offen sc1' % (V_T, V_T + 1, SRD_WS))
    e('s_waitcnt vmcnt(0)')
    e('v_cmp_eq_u32 vcc, 1, v%d' % V_T)
    e('s_nop 4')
    e('s_cmp_eq_u64 vcc, -1')
    e('s_cbranch_scc1 %s' % wo)
    e('s_add_u32 s%d, s%d, 1' % (T2, T2))
    e('s_cmp_lt_u32 s%d, %d' % (T2, SPIN_MAX))
    e('s_cbranch_scc1 %s' % wl)
    e('v_mov_b32 v%d, 0xdeae' % V_T)
    e('v_mov_b32 v%d, 0' % (V_T + 1))
    e('s_mov_b32 s%d, %d' % (T2, OFF_CNT + CNT_ERR))
    e('buffer_store_dword v%d, v%d, %s, s%d offen sc1' % (V_T, V_T + 1, SRD_WS, T2))
    a.label(wo)
    e('s_waitcnt vmcnt(0)')
    e('s_barrier')
    for back, kl, vl in ((2, 0, L_VF), (1, 16384, L_VF + 12288)):
        miss = a.newlabel('halo_miss')
        nxt = a.newlabel('halo_next')
        e('s_cmp_lt_u32 s%d, %d' % (S_R, back))
        e('s_cbranch_scc1 %s' % miss)
        e('s_sub_u32 s%d, s68, %d' % (T4, back * HALOBLK))
        e('s_lshl_b32 s%d, s%d, 12' % (T0, S_WAVE))
        e('s_add_u32 s%d, s%d, s%d' % (T1, T4, T0))
        e('s_add_u32 s%d, s%d, %d' % (T0, T0, kl))
        e('s_mov_b32 m0, s%d' % T0)
        for n in range(4):
            e('buffer_load_dwordx4 v%d, %s, s%d offen offset:%d sc1 lds' % (V_L16, SRD_WS, T1, n * 1024))
        e('s_mul_i32 s%d, s%d, 3072' % (T0, S_WAVE))
        e('s_add_u32 s%d, s%d, s%d' % (T1, T4, T0))
        e('s_add_u32 s%d, s%d, 16384' % (T1, T1))
        e('s_add_u32 s%d, s%d, %d' % (T0, T0, vl))
        e('s_mov_b32 m0, s%d' % T0)
        for n in range(3):
            e('buffer_load_dwordx4 v%d, %s, s%d offen offset:%d sc1 lds' % (V_L16, SRD_WS, T1, n * 1024))
        e('s_branch %s' % nxt)
        a.label(miss)
        Z = V_T + 4
        e('v_mov_b32 v%d, 0' % Z)
        e('v_mov_b32 v%d, 0' % (Z + 1))
        e('v_mov_b32 v%d, 0xf14a' % (Z + 3))
        e('v_cmp_eq_u32 %s, 3, v%d' % (S_W0, V_G))
        e('v_cndmask_b32_e64 v%d, 0, v%d, %s' % (Z + 2, Z + 3, S_W0))
        e('v_mov_b32 v%d, 0' % (Z + 3))
        e('s_lshl_b32 s%d, s%d, 12' % (T0, S_WAVE))
        e('s_add_u32 s%d, s%d, %d' % (T0, T0, kl))
        e('v_add_u32 v%d, s%d, v%d' % (V_T, T0, V_L16))
        for n in range(4):
            e('ds_write_b128 v%d, %s offset:%d' % (V_T, vr(Z, 4), n * 1024))
        e('v_mov_b32 v%d, 0' % (Z + 2))
        e('s_mul_i32 s%d, s%d, 3072' % (T0, S_WAVE))
        e('s_add_u32 s%d, s%d, %d' % (T0, T0, vl))
        e('v_add_u32 v%d, s%d, v%d' % (V_T, T0, V_L16))
        for n in range(3):
            e('ds_write_b128 v%d, %s offset:%d' % (V_T, vr(Z, 4), n * 1024))
        e('s_waitcnt lgkmcnt(0)')
        a.label(nxt)
    e('s_waitcnt vmcnt(0) lgkmcnt(0)')
    e('s_barrier')

    CD, CF = V_T + 4, V_T + 8
    NB0 = V_T + 12
    e('v_mov_b32 v%d, 0x%x' % (NB0, NEGBIG))
    e('v_lshlrev_b32 v%d, 2, v%d' % (NB0 + 1, V_G))
    for r in range(4):
        e('v_add_u32 v%d, %d, v%d' % (NB0 + 2, r, NB0 + 1))
        e('v_cmp_le_u32 %s, v%d, v%d' % (S_W0, NB0 + 2, V_I))
        e('v_cndmask_b32_e64 v%d, v%d, 0, %s' % (CD + r, NB0, S_W0))
        e('v_cndmask_b32_e64 v%d, 0, v%d, %s' % (CF + r, NB0, S_W0))
    VK, VV = V_T + 12, V_T + 13
    e('s_lshl_b32 s%d, s%d, 12' % (T0, S_WAVE))
    e('v_add_u32 v%d, s%d, v%d' % (VK, T0, V_L16))
    e('s_mul_i32 s%d, s%d, 3072' % (T0, S_WAVE))
    e('s_add_u32 s%d, s%d, %d' % (T0, T0, L_VF))
    e('v_add_u32 v%d, s%d, v%d' % (VV, T0, V_L16))
    SREG = V_ACC
    MX = V_T + 14
    TM = V_T + 16
    PB = V_T + 20
    OH, O2 = V_T + 56, V_T + 60
    OUT = V_T + 64
    LEFT = V_T + 68
    ZERO2 = V_T + 70
    AK = 0
    AV = 80
    e('s_mul_i32 s%d, s%d, %d' % (T0, S_L, FMSZ))
    e('s_lshl_b32 s%d, s%d, 3' % (T1, S_R))
    e('s_lshl_b32 s%d, s%d, 1' % (T2, S_WAVE))
    e('s_add_u32 s%d, s%d, s%d' % (T1, T1, T2))
    e('s_mul_i32 s%d, s%d, 20480' % (T1, T1))
    e('s_add_u32 s%d, s%d, s%d' % (T0, T0, T1))
    e('s_add_u32 s%d, s%d, %d' % (T0, T0, OFF_O))
    e('s_lshl_b32 s%d, s%d, 10' % (T1, S_P))
    e('s_add_u32 s70, s%d, s%d' % (T0, T1))
    e('s_lshr_b32 s%d, s%d, 2' % (T2, S_P))
    e('s_add_u32 s%d, s%d, 16' % (T2, T2))
    e('s_lshl_b32 s%d, s%d, 10' % (T2, T2))
    e('s_add_u32 s%d, s%d, s%d' % (T2, T0, T2))
    e('s_and_b32 s%d, s%d, 3' % (T3, S_P))
    e('s_lshl_b32 s%d, s%d, 8' % (T3, T3))
    e('s_add_u32 s71, s%d, s%d' % (T2, T3))
    LO = V_T + 72
    e('v_and_b32 v%d, 1, v%d' % (LO, V_G))
    e('v_lshlrev_b32 v%d, 3, v%d' % (LO, LO))
    e('v_lshl_add_u32 v%d, v%d, 4, v%d' % (LO, V_I, LO))
    for b in range(2):
        for h in range(2):
            LA = 10
            q = ar(AQ + (b * 2 + h) * 4, 4)

            def kread(n):
                e('ds_read_b128 %s, v%d offset:%d' % (ar(AK + 4 * n, 4), VK, (b + n) * 2048 + h * 1024))
            for n in range(LA):
                kread(n)
            for n in range(17):
                if n + LA < 17:
                    kread(n + LA)
                    e('s_waitcnt lgkmcnt(%d)' % LA)
                else:
                    e('s_waitcnt lgkmcnt(%d)' % (16 - n))
                c = vr(CF, 4) if n == 0 else (vr(CD, 4) if n == 16 else '0')
                e('v_mfma_f32_16x16x32_bf16 %s, %s, %s, %s' % (vr(SREG + 4 * n, 4), ar(AK + 4 * n, 4), q, c))

            def vread(jj):
                e('ds_read_b128 %s, v%d offset:%d' % (ar(AV + 8 * jj, 4), VV, jj * 3072 + h * 1024))
                e('ds_read_b128 %s, v%d offset:%d' % (ar(AV + 8 * jj + 4, 4), VV, jj * 3072 + 2048))
            for jj in range(5):
                vread(jj)
            e('v_max3_f32 v%d, v%d, v%d, v%d' % (MX, SREG, SREG + 1, SREG + 2))
            k = 3
            while k + 1 < 68:
                e('v_max3_f32 v%d, v%d, v%d, v%d' % (MX, MX, SREG + k, SREG + k + 1))
                k += 2
            e('v_max_f32 v%d, v%d, v%d' % (MX, MX, SREG + 67))
            e('v_mov_b32 v%d, v%d' % (TM, MX))
            e('v_permlane32_swap_b32 v%d, v%d' % (MX, TM))
            e('v_max_f32 v%d, v%d, v%d' % (MX, MX, TM))
            e('v_mov_b32 v%d, v%d' % (TM, MX))
            e('v_permlane16_swap_b32 v%d, v%d' % (MX, TM))
            e('v_max_f32 v%d, v%d, v%d' % (MX, MX, TM))
            e('s_waitcnt lgkmcnt(4)')
            for jj in range(5, 9):
                vread(jj)
            for k in range(34):
                e('v_pk_add_f32 %s, %s, %s op_sel_hi:[1,0] neg_lo:[0,1] neg_hi:[0,1]' % (
                    vr(SREG + 2 * k, 2), vr(SREG + 2 * k, 2), vr(MX, 2)))
            for k in range(68):
                e('v_exp_f32 v%d, v%d' % (SREG + k, SREG + k))
            for jj in range(9):
                n1, n2 = (2 * jj, 2 * jj + 1) if b == 0 else (2 * jj - 1, 2 * jj)
                for half, n in enumerate((n1, n2)):
                    d = PB + 4 * jj + 2 * half
                    if 0 <= n <= 16:
                        M.pack4(d, SREG + 4 * n)
                    else:
                        e('v_mov_b32 v%d, 0' % d)
                        e('v_mov_b32 v%d, 0' % (d + 1))
            e('s_waitcnt lgkmcnt(0)')
            for jj in range(9):
                cO = '0' if jj == 0 else vr(OH, 4)
                c2 = '0' if jj == 0 else vr(O2, 4)
                e('v_mfma_f32_16x16x32_bf16 %s, %s, %s, %s' % (vr(OH, 4), ar(AV + 8 * jj, 4), vr(PB + 4 * jj, 4), cO))
                e('v_mfma_f32_16x16x32_bf16 %s, %s, %s, %s' % (vr(O2, 4), ar(AV + 8 * jj + 4, 4), vr(PB + 4 * jj, 4), c2))
            e('v_mov_b32 v%d, v%d' % (TM, O2))
            e('v_mov_b32 v%d, v%d' % (TM + 1, O2))
            e('v_permlane32_swap_b32 v%d, v%d' % (TM + 1, TM))
            e('v_rcp_f32 v%d, v%d' % (TM, TM))
            for rp in range(2):
                e('v_pk_mul_f32 %s, %s, %s op_sel_hi:[1,0]' % (vr(OH + 2 * rp, 2), vr(OH + 2 * rp, 2), vr(TM, 2)))
                e('v_pk_mul_f32 %s, %s, %s op_sel_hi:[1,0]' % (vr(O2 + 2 * rp, 2), vr(O2 + 2 * rp, 2), vr(TM, 2)))
            M.pack4(OUT + 2 * h, OH)
            if h == 0:
                M.pack4(LEFT, O2)
            else:
                M.pack4(TM + 2, O2)
                e('v_cndmask_b32_e64 v%d, v%d, v%d, %s' % (LEFT, LEFT, TM + 2, S_G1))
                e('v_cndmask_b32_e64 v%d, v%d, v%d, %s' % (LEFT + 1, LEFT + 1, TM + 3, S_G1))
        e('buffer_store_dwordx4 %s, v%d, %s, s70 offen sc1' % (vr(OUT, 4), V_L16, SRD_WS))
        e('s_mov_b64 exec, %s' % S_LO)
        e('buffer_store_dwordx2 %s, v%d, %s, s71 offen sc1' % (vr(LEFT, 2), LO, SRD_WS))
        e('s_mov_b64 exec, -1')
        if b == 0:
            e('s_add_u32 s70, s70, 20480')
            e('s_add_u32 s71, s71, 20480')
    M.signal(S_ROWC)
    e('s_add_u32 s%d, s%d, 16' % (S_ROWT, S_ROWT))
```

```python
from asmlib import *
from layout import *

LDS = 163840
DESC = '''.amdhsa_kernel main_kernel
  .amdhsa_next_free_vgpr 512
  .amdhsa_next_free_sgpr 102
  .amdhsa_accum_offset 256
  .amdhsa_group_segment_fixed_size 0
  .amdhsa_kernarg_size 72
  .amdhsa_user_sgpr_count 2
  .amdhsa_user_sgpr_kernarg_segment_ptr 1
  .amdhsa_system_sgpr_workgroup_id_x 1
  .amdhsa_float_denorm_mode_32 3
.end_amdhsa_kernel
'''

L_CS = 153600
L_STA = 154624
L_STB = 155136
L_KF = 0
L_VF = 49152

S_WAVE = 3
SRD_WS = 's[8:11]'
SRD_X = 's[12:15]'
SRD_OUT = 's[16:19]'
S_R, S_P, S_C, S_HH = 20, 21, 22, 23
S_IT = 24
S_ROWT = 25
S_ROWC = 26
S_COLC = 27
S_L = 28
S_M8 = 's[40:41]'
S_G0 = 's[42:43]'
S_G1 = 's[44:45]'
S_G2 = 's[46:47]'
S_LOG2E = 's[48:49]'
S_EPS = 's[50:51]'
S_HI = 's[52:53]'
S_LO = 's[54:55]'
S_W0 = 's[56:57]'
T0, T1, T2, T3, T4, T5 = 60, 61, 62, 63, 64, 65

V_LANE, V_L16 = 1, 2
V_LDS = (3, 4, 5)
V_LDH = (6, 7, 8)
V_G, V_I = 9, 10
V_XRES = 12
V_ACC = 32
V_RING = 96
NRING = 6
V_SA, V_SB = 120, 128
V_SAT, V_SBT = 136, 138
V_T = 140

LOG2E = 0x3fb8aa3b
EPS6 = 0x358637bd
QSCALE = 0.22360679774997896 * 1.4426950408889634
NEGBIG = 0xf149f2ca
SPIN_MAX = 400000


def f2u(x):
    import struct
    return struct.unpack('<I', struct.pack('<f', x))[0]


def acc(ft, tt):
    return V_ACC + (ft * 2 + tt) * 4


def lds_addr(off, half=False):
    seg = off >> 16
    return ((V_LDH if half else V_LDS)[seg], off & 0xffff)


class Main:
    def __init__(self, a, opts):
        self.a = a
        self.e = a.e
        self.opts = opts
        self.stop = opts.get('stop', '')

    def end_if(self, tag):
        if self.stop == tag:
            self.e('s_waitcnt vmcnt(0) lgkmcnt(0)')
            self.e('s_endpgm')
            return True
        return False

    def dma_linear(self, nkb, s_goff, lds0, waves_split=True):
        e = self.e
        per = (nkb + 3) // 4
        e('s_mul_i32 s%d, s%d, %d' % (T0, S_WAVE, per * 1024))
        e('s_add_u32 s%d, s%d, s%d' % (T1, s_goff, T0))
        e('s_add_u32 s%d, s%d, %d' % (T0, T0, lds0))
        last = nkb - 3 * per
        skip = self.a.newlabel('dma_skip')
        for n in range(per):
            if n == last and last < per:
                e('s_cmp_eq_u32 s%d, 3' % S_WAVE)
                e('s_cbranch_scc1 %s' % skip)
            if n % 4 == 0:
                e('s_mov_b32 m0, s%d' % T0)
            e('buffer_load_dwordx4 v%d, %s, s%d offen offset:%d lds' % (V_L16, SRD_WS, T1, (n % 4) * 1024))
            if n % 4 == 3:
                e('s_add_u32 s%d, s%d, 4096' % (T0, T0))
                e('s_add_u32 s%d, s%d, 4096' % (T1, T1))
        if last < per:
            self.a.label(skip)

    def signal(self, s_cnt_off):
        e = self.e
        e('s_waitcnt vmcnt(0) lgkmcnt(0)')
        e('s_barrier')
        lab = self.a.newlabel('sig')
        e('s_cmp_lg_u32 s%d, 0' % S_WAVE)
        e('s_cbranch_scc1 %s' % lab)
        e('v_mov_b32 v%d, 1' % V_T)
        e('v_mov_b32 v%d, 0' % (V_T + 1))
        e('s_mov_b64 exec, 1')
        e('buffer_atomic_add v%d, v%d, %s, s%d offen sc1' % (V_T, V_T + 1, SRD_WS, s_cnt_off))
        e('s_mov_b64 exec, -1')
        self.a.label(lab)

    def wait_cnt(self, s_cnt_off, target):
        e = self.e
        done = self.a.newlabel('wdone')
        loop = self.a.newlabel('wloop')
        out = self.a.newlabel('wout')
        e('s_cmp_lg_u32 s%d, 0' % S_WAVE)
        e('s_cbranch_scc1 %s' % out)
        e('s_cmp_eq_u32 %s, 0' % target)
        e('s_cbranch_scc1 %s' % out)
        e('v_mov_b32 v%d, 0' % (V_T + 1))
        e('s_mov_b32 s%d, 0' % T2)
        self.a.label(loop)
        e('buffer_load_dword v%d, v%d, %s, s%d offen sc1' % (V_T, V_T + 1, SRD_WS, s_cnt_off))
        e('s_waitcnt vmcnt(0)')
        e('v_readfirstlane_b32 s%d, v%d' % (T3, V_T))
        e('s_nop 1')
        e('s_cmp_ge_u32 s%d, %s' % (T3, target))
        e('s_cbranch_scc1 %s' % out)
        e('s_add_u32 s%d, s%d, 1' % (T2, T2))
        e('s_cmp_lt_u32 s%d, %d' % (T2, SPIN_MAX))
        e('s_cbranch_scc1 %s' % loop)
        e('v_mov_b32 v%d, 0xdead' % V_T)
        e('s_mov_b32 s%d, %d' % (T2, OFF_CNT + CNT_ERR))
        e('buffer_store_dword v%d, v%d, %s, s%d offen sc1' % (V_T, V_T + 1, SRD_WS, T2))
        self.a.label(out)
        e('s_waitcnt vmcnt(0)')
        e('s_barrier')

    def prologue(self):
        a, e = self.a, self.e
        a.raw('.globl main_kernel')
        a.raw('.p2align 8')
        a.raw('.type main_kernel,@function')
        a.label('main_kernel')
        e('s_cmp_ge_u32 s2, 256')
        e('s_cbranch_scc1 MAIN_end')
        e('s_load_dwordx2 s[4:5], s[0:1], 64')
        e('s_load_dwordx2 s[6:7], s[0:1], 0')
        e('s_load_dwordx2 s[30:31], s[0:1], 48')
        e('v_and_b32 v%d, 63, v0' % V_LANE)
        e('v_lshrrev_b32 v2, 6, v0')
        e('s_nop 0')
        e('v_readfirstlane_b32 s%d, v2' % S_WAVE)
        e('s_and_b32 s%d, s2, 7' % S_R)
        e('s_lshl_b32 s%d, s%d, 1' % (S_R, S_R))
        e('s_bfe_u32 s%d, s2, 0x10003' % T0)
        e('s_add_u32 s%d, s%d, s%d' % (S_R, S_R, T0))
        e('s_lshr_b32 s%d, s2, 4' % S_P)
        e('s_lshr_b32 s%d, s%d, 1' % (S_C, S_P))
        e('s_and_b32 s%d, s%d, 1' % (S_HH, S_P))
        e('s_waitcnt lgkmcnt(0)')
        for (b, lo, hi, size) in ((8, 4, 5, WS_USED), (12, 6, 7, FMSZ), (16, 30, 31, FMSZ)):
            e('s_mov_b32 s%d, s%d' % (b, lo))
            e('s_and_b32 s%d, s%d, 0xffff' % (b + 1, hi))
            e('s_mov_b32 s%d, %d' % (b + 2, size))
            e('s_mov_b32 s%d, 0x20000' % (b + 3))
        e('s_lshl_b32 s%d, s%d, 7' % (S_ROWC, S_R))
        e('s_add_u32 s%d, s%d, %d' % (S_ROWC, S_ROWC, OFF_CNT + CNT_ROW))
        e('s_lshl_b32 s%d, s%d, 7' % (S_COLC, S_P))
        e('s_add_u32 s%d, s%d, %d' % (S_COLC, S_COLC, OFF_CNT + CNT_COL))
        e('s_mov_b32 s%d, 0' % S_ROWT)
        e('s_mov_b32 s%d, 0' % S_IT)
        e('v_lshlrev_b32 v%d, 4, v%d' % (V_L16, V_LANE))
        e('v_lshrrev_b32 v%d, 4, v%d' % (V_G, V_LANE))
        e('v_and_b32 v%d, 15, v%d' % (V_I, V_LANE))
        e('v_mov_b32 v%d, v%d' % (V_LDS[0], V_L16))
        e('v_add_u32 v%d, 0x10000, v%d' % (V_LDS[1], V_L16))
        e('v_add_u32 v%d, 0x20000, v%d' % (V_LDS[2], V_L16))
        e('v_and_b32 v%d, 7, v%d' % (V_T, V_LANE))
        e('v_lshlrev_b32 v%d, 4, v%d' % (V_T, V_T))
        e('v_lshl_add_u32 v%d, v%d, 7, v%d' % (V_LDH[0], V_G, V_T))
        e('v_add_u32 v%d, 0x10000, v%d' % (V_LDH[1], V_LDH[0]))
        e('v_add_u32 v%d, 0x20000, v%d' % (V_LDH[2], V_LDH[0]))
        e('v_cmp_gt_u32 %s, 8, v%d' % (S_M8, V_I))
        e('v_cmp_eq_u32 %s, 0, v%d' % (S_G0, V_G))
        e('v_cmp_eq_u32 %s, 1, v%d' % (S_G1, V_G))
        e('v_cmp_eq_u32 %s, 2, v%d' % (S_G2, V_G))
        e('s_mov_b32 s48, 0x%x' % LOG2E)
        e('s_mov_b32 s49, 0x%x' % LOG2E)
        e('s_mov_b32 s50, 0x%x' % EPS6)
        e('s_mov_b32 s51, 0x%x' % EPS6)
        e('s_mov_b32 s52, 0')
        e('s_mov_b32 s53, -1')
        e('s_mov_b32 s54, -1')
        e('s_mov_b32 s55, 0')
        e('v_lshrrev_b32 v%d, 7, v0' % V_T)
        e('v_mul_lo_u32 v%d, v%d, s%d' % (V_T, V_T, 99) if False else 's_mov_b32 s%d, %d' % (T0, CS_M))
        e('v_mul_lo_u32 v%d, v%d, s%d' % (V_T, V_T, T0))
        e('v_and_b32 v%d, 127, v0' % (V_T + 1))
        e('v_lshl_add_u32 v%d, v%d, 2, v%d' % (V_T, V_T + 1, V_T))
        e('s_lshl_b32 s%d, s%d, 9' % (T0, S_P))
        e('s_add_u32 s%d, s%d, %d' % (T0, T0, OFF_CS))
        for ks in range(20):
            e('buffer_load_dword v%d, v%d, %s, s%d offen' % (V_ACC + ks, V_T, SRD_WS, T0))
            e('s_add_u32 s%d, s%d, 8192' % (T0, T0))
        e('s_lshl_b32 s%d, s%d, 3' % (T0, S_R))
        e('s_lshl_b32 s%d, s%d, 2' % (T1, S_HH))
        e('s_add_u32 s%d, s%d, s%d' % (T0, T0, T1))
        e('s_add_u32 s%d, s%d, s%d' % (T0, T0, S_WAVE))
        e('s_mul_i32 s%d, s%d, %d' % (T0, T0, 16 * 1280))
        e('s_mul_i32 s%d, s%d, 160' % (T1, S_C))
        e('s_add_u32 s%d, s%d, s%d' % (T0, T0, T1))
        e('v_mul_u32_u24 v%d, 1280, v%d' % (V_T + 2, V_I))
        e('v_lshl_add_u32 v%d, v%d, 4, v%d' % (V_T + 3, V_G, V_T + 2))
        e('v_lshl_add_u32 v%d, v%d, 3, v%d' % (V_T + 4, V_G, V_T + 2))
        X = V_T + 8
        e('buffer_load_dwordx4 %s, v%d, %s, s%d offen' % (vr(X, 4), V_T + 3, SRD_X, T0))
        e('buffer_load_dwordx4 %s, v%d, %s, s%d offen offset:64' % (vr(X + 4, 4), V_T + 3, SRD_X, T0))
        e('buffer_load_dwordx2 %s, v%d, %s, s%d offen offset:128' % (vr(X + 8, 2), V_T + 4, SRD_X, T0))
        e('s_waitcnt vmcnt(3)')
        for k in range(1, 20):
            e('v_add_f32 v%d, v%d, v%d' % (V_ACC, V_ACC, V_ACC + k))
        e('v_lshlrev_b32 v%d, 2, v0' % (V_T + 5))
        e('v_add_u32 v%d, %d, v%d' % (V_T + 5, L_CS, V_T + 5))
        e('ds_write_b32 v%d, v%d' % (V_T + 5, V_ACC))
        e('s_waitcnt vmcnt(0)')
        for k in range(10):
            e('v_lshlrev_b32 v%d, 16, v%d' % (V_XRES + 2 * k, X + k))
            e('v_and_b32 v%d, 0xffff0000, v%d' % (V_XRES + 2 * k + 1, X + k))
        e('s_waitcnt lgkmcnt(0)')

    def q_loads(self):
        e = self.e
        e('s_mul_i32 s%d, s%d, %d' % (T0, S_L, STSZ))
        e('s_lshl_b32 s%d, s%d, 13' % (T1, S_R))
        e('s_add_u32 s%d, s%d, s%d' % (T0, T0, T1))
        e('s_lshl_b32 s%d, s%d, 11' % (T1, S_WAVE))
        e('s_add_u32 s%d, s%d, s%d' % (T0, T0, T1))
        e('s_add_u32 s%d, s%d, %d' % (T0, T0, OFF_ST))
        e('v_and_b32 v%d, 31, v%d' % (V_T, V_LANE))
        e('v_lshlrev_b32 v%d, 6, v%d' % (V_T, V_T))
        ST = V_T + 4
        for k in range(4):
            e('buffer_load_dwordx4 %s, v%d, %s, s%d offen offset:%d sc1' % (vr(ST + 4 * k, 4), V_T, SRD_WS, T0, 16 * k))
        e('s_mul_i32 s%d, s%d, %d' % (T0, S_L, FMSZ))
        e('s_lshl_b32 s%d, s%d, 3' % (T1, S_R))
        e('s_lshl_b32 s%d, s%d, 1' % (T2, S_WAVE))
        e('s_add_u32 s%d, s%d, s%d' % (T1, T1, T2))
        e('s_mul_i32 s%d, s%d, 20480' % (T1, T1))
        e('s_add_u32 s%d, s%d, s%d' % (T0, T0, T1))
        e('s_add_u32 s%d, s%d, %d' % (T0, T0, OFF_X))
        e('s_add_u32 s%d, s%d, 20480' % (T1, T0))
        for ks in range(20):
            if ks and ks % 4 == 0:
                e('s_add_u32 s%d, s%d, 4096' % (T0, T0))
                e('s_add_u32 s%d, s%d, 4096' % (T1, T1))
            for tt in range(2):
                e('buffer_load_dwordx4 %s, v%d, %s, s%d offen offset:%d sc1' % (
                    ar((ks * 2 + tt) * 4, 4), V_L16, SRD_WS, T0 + tt, (ks % 4) * 1024))
        e('s_waitcnt vmcnt(40)')
        S_, Q_ = V_T + 1, V_T + 2
        e('v_add_f32 v%d, v%d, v%d' % (S_, ST, ST + 2))
        e('v_add_f32 v%d, v%d, v%d' % (Q_, ST + 1, ST + 3))
        for k in range(2, 8):
            e('v_add_f32 v%d, v%d, v%d' % (S_, S_, ST + 2 * k))
            e('v_add_f32 v%d, v%d, v%d' % (Q_, Q_, ST + 2 * k + 1))
        e('v_mul_f32 v%d, 0x%x, v%d' % (S_, f2u(1.0 / 640), S_))
        e('v_mul_f32 v%d, 0x%x, v%d' % (Q_, f2u(1.0 / 640), Q_))
        e('v_fma_f32 v%d, -v%d, v%d, v%d' % (Q_, S_, S_, Q_))
        e('v_max_f32 v%d, 0, v%d' % (Q_, Q_))
        e('v_add_f32 v%d, 0x%x, v%d' % (Q_, f2u(1e-5), Q_))
        e('v_rsq_f32 v%d, v%d' % (Q_, Q_))
        e('v_mul_f32 v%d, v%d, v%d' % (S_, S_, Q_))
        e('v_sub_f32 v%d, 0, v%d' % (S_, S_))
        e('v_and_b32 v%d, 31, v%d' % (V_T, V_LANE))
        e('s_lshl_b32 s%d, s%d, 7' % (T0, S_WAVE))
        e('v_lshl_add_u32 v%d, v%d, 2, s%d' % (V_T, V_T, T0))
        e('v_add_u32 v%d, %d, v%d' % (V_T, L_STA, V_T))
        e('ds_write_b32 v%d, v%d' % (V_T, Q_))
        e('ds_write_b32 v%d, v%d offset:512' % (V_T, S_))
        e('s_waitcnt lgkmcnt(0)')
        e('v_lshl_add_u32 v%d, v%d, 4, s%d' % (V_T, V_G, T0))
        e('v_add_u32 v%d, %d, v%d' % (V_T, L_STA, V_T))
        for tt in range(2):
            e('ds_read_b128 %s, v%d offset:%d' % (vr(V_SA + 4 * tt, 4), V_T, 64 * tt))
            e('ds_read_b128 %s, v%d offset:%d' % (vr(V_SB + 4 * tt, 4), V_T, 512 + 64 * tt))
        e('v_lshl_add_u32 v%d, v%d, 2, s%d' % (V_T + 1, V_I, T0))
        e('v_add_u32 v%d, %d, v%d' % (V_T + 1, L_STA, V_T + 1))
        for tt in range(2):
            e('ds_read_b32 v%d, v%d offset:%d' % (V_SAT + tt, V_T + 1, 64 * tt))
            e('ds_read_b32 v%d, v%d offset:%d' % (V_SBT + tt, V_T + 1, 512 + 64 * tt))
        e('s_waitcnt lgkmcnt(0)')

    def gemm_pass(self, m, tiles, accs, transposed, wait_a):
        e = self.e
        steps = [(ks, n) for ks in range(20) for n in range(len(tiles))]

        def issue(idx):
            ks, n = steps[idx]
            t = tiles[n]
            v, imm = lds_addr(wfrag_off(m, ks, t), w_is_half(m, t))
            e('ds_read_b128 %s, v%d offset:%d' % (vr(V_RING + (idx % NRING) * 4, 4), v, imm))
        pre = NRING - 1
        for i in range(pre):
            issue(i)
        for idx, (ks, n) in enumerate(steps):
            if idx + pre < len(steps):
                issue(idx + pre)
                e('s_waitcnt lgkmcnt(%d)' % pre)
            else:
                e('s_waitcnt lgkmcnt(%d)' % (len(steps) - 1 - idx))
            if n == 0 and wait_a:
                e('s_waitcnt vmcnt(%d)' % (38 - 2 * ks))
            b = vr(V_RING + (idx % NRING) * 4, 4)
            for tt in range(2):
                d = vr(acc(accs[n], tt), 4)
                x = ar((ks * 2 + tt) * 4, 4)
                c = '0' if ks == 0 else d
                if transposed[n]:
                    e('v_mfma_f32_16x16x32_bf16 %s, %s, %s, %s' % (d, b, x, c))
                else:
                    e('v_mfma_f32_16x16x32_bf16 %s, %s, %s, %s' % (d, x, b, c))

    def fold_normal(self, A, tt, cs, addend):
        e = self.e
        t = V_T + 60
        for rp in range(2):
            sa = vr(V_SA + tt * 4 + 2 * rp, 2)
            sb = vr(V_SB + tt * 4 + 2 * rp, 2)
            csp, hi = (cs & ~1), (cs & 1)
            sel = 'op_sel:[0,%d,0] op_sel_hi:[1,%d,%%d]' % (hi, hi)
            if addend is None:
                e('v_pk_mul_f32 %s, %s, %s op_sel:[0,%d] op_sel_hi:[1,%d]' % (vr(t, 2), sb, vr(csp, 2), hi, hi))
            elif isinstance(addend, str):
                e('v_pk_fma_f32 %s, %s, %s, %s %s' % (vr(t, 2), sb, vr(csp, 2), addend, sel % 1))
            else:
                ap, ah = (addend & ~1), (addend & 1)
                e('v_pk_fma_f32 %s, %s, %s, %s op_sel:[0,%d,%d] op_sel_hi:[1,%d,%d]' % (
                    vr(t, 2), sb, vr(csp, 2), vr(ap, 2), hi, ah, hi, ah))
            e('v_pk_fma_f32 %s, %s, %s, %s' % (vr(A + 2 * rp, 2), vr(A + 2 * rp, 2), sa, vr(t, 2)))

    def fold_trans(self, A, tt, cs4, addend, sat=V_SAT, sbt=V_SBT):
        e = self.e
        t = V_T + 60
        for rp in range(2):
            if addend is None:
                e('v_pk_mul_f32 %s, %s, %s op_sel:[0,%d] op_sel_hi:[1,%d]' % (vr(t, 2), vr(cs4 + 2 * rp, 2), vr(sbt, 2), tt, tt))
            else:
                e('v_pk_fma_f32 %s, %s, %s, %s op_sel:[0,%d,0] op_sel_hi:[1,%d,1]' % (
                    vr(t, 2), vr(cs4 + 2 * rp, 2), vr(sbt, 2), addend, tt, tt))
            e('v_pk_fma_f32 %s, %s, %s, %s op_sel:[0,%d,0] op_sel_hi:[1,%d,1]' % (
                vr(A + 2 * rp, 2), vr(A + 2 * rp, 2), vr(sat, 2), vr(t, 2), tt, tt))

    def phi(self, A, dst=None):
        e = self.e
        dst = A if dst is None else dst
        u = V_T + 62
        for rp in range(2):
            e('v_pk_mul_f32 %s, %s, %s' % (vr(u + 2 * rp, 2), vr(A + 2 * rp, 2), S_LOG2E))
        for r in range(4):
            e('v_exp_f32_e64 v%d, v%d clamp' % (u + r, u + r))
        for r in range(4):
            e('v_max_f32 v%d, s50, v%d' % (dst + r, A + r))
        for rp in range(2):
            e('v_pk_add_f32 %s, %s, %s' % (vr(dst + 2 * rp, 2), vr(dst + 2 * rp, 2), vr(u + 2 * rp, 2)))

    def pack4(self, dst2, A):
        e = self.e
        e('v_cvt_pk_bf16_f32 v%d, v%d, v%d' % (dst2, A, A + 1))
        e('v_cvt_pk_bf16_f32 v%d, v%d, v%d' % (dst2 + 1, A + 2, A + 3))

    def read_cs_normal(self, m, tiles, dst):
        e = self.e
        e('v_lshlrev_b32 v%d, 2, v%d' % (V_T + 58, V_I))
        e('v_add_u32 v%d, %d, v%d' % (V_T + 58, L_CS + m * 512, V_T + 58))
        for n, t in enumerate(tiles):
            e('ds_read_b32 v%d, v%d offset:%d' % (dst + n, V_T + 58, t * 64))

    def read_cs_trans(self, m, tiles, dst):
        e = self.e
        e('v_lshlrev_b32 v%d, 4, v%d' % (V_T + 59, V_G))
        e('v_add_u32 v%d, %d, v%d' % (V_T + 59, L_CS + m * 512, V_T + 59))
        for n, t in enumerate(tiles):
            e('ds_read_b128 %s, v%d offset:%d' % (vr(dst + 4 * n, 4), V_T + 59, t * 64))

    def layer_a(self):
        a, e = self.a, self.e
        e('s_lshl_b32 s%d, s%d, 1' % (S_L, S_IT))
        e('s_mul_i32 s%d, s%d, %d' % (T4, S_P, WTILE))
        e('s_add_u32 s%d, s%d, %d' % (T4, T4, OFF_WA))
        self.dma_linear(150, T4, 0)
        self.wait_cnt(S_ROWC, 's%d' % S_ROWT)
        self.q_loads()
        self.gemm_pass(0, [0, 1, 2, 3, 4], [0, 1, 2, 3, 4], [0] * 5, True)
        CS = V_T + 4
        self.read_cs_normal(0, [0, 1, 2, 3, 4], CS)
        EPL = V_T + 10
        e('v_mov_b32 v%d, s50' % (EPL + 1))
        e('v_cndmask_b32_e64 v%d, 0, v%d, %s' % (EPL, EPL + 1, S_M8))
        e('s_waitcnt lgkmcnt(0)')
        for tt in range(2):
            self.fold_normal(acc(0, tt), tt, CS + 0, S_EPS)
            self.fold_normal(acc(1, tt), tt, CS + 1, S_EPS)
            self.fold_normal(acc(2, tt), tt, CS + 2, None)
            self.fold_normal(acc(3, tt), tt, CS + 3, None)
            self.fold_normal(acc(4, tt), tt, CS + 4, EPL)
        PH = V_T + 12
        F = V_T + 16
        for tt in range(2):
            self.phi(acc(0, tt))
            self.phi(acc(1, tt))
            self.phi(acc(4, tt), PH)
            for r in range(4):
                e('v_cndmask_b32_e64 v%d, v%d, v%d, %s' % (acc(4, tt) + r, acc(4, tt) + r, PH + r, S_M8))
            for ft in range(5):
                self.pack4(F + 4 * ft + 2 * tt, acc(ft, tt))
        e('v_mov_b32 v%d, 0x3f803f80' % PH)
        for r in range(4):
            e('v_cndmask_b32_e64 v%d, v%d, v%d, %s' % (F + 20 + r, F + 16 + r, PH, S_M8))
        K0, K1, V0, V1, KA, KB = (vr(F + 4 * n, 4) for n in range(6))
        KV = V_T + 40 - 0
        KV = V_ACC
        for n, (x, y) in enumerate(((K0, V0), (KA, V0), (K1, V1), (KA, V1), (K0, KB), (K1, KB), (KA, KB))):
            e('v_mfma_f32_16x16x32_bf16 %s, %s, %s, 0' % (vr(KV + 4 * n, 4), x, y))
        e('s_barrier')
        e('s_mul_i32 s%d, s%d, 7168' % (T0, S_WAVE))
        e('v_add_u32 v%d, s%d, v%d' % (V_T, T0, V_L16))
        for n in range(7):
            e('ds_write_b128 v%d, %s offset:%d' % (V_T, vr(KV + 4 * n, 4), n * 1024))
        e('s_waitcnt lgkmcnt(0)')
        e('s_barrier')
        e('s_lshl_b32 s%d, s%d, 10' % (T0, S_WAVE))
        e('v_add_u32 v%d, s%d, v%d' % (V_T, T0, V_L16))
        R = V_ACC + 32
        for h in range(2):
            for src in range(4):
                e('ds_read_b128 %s, v%d offset:%d' % (vr(R + (h * 4 + src) * 4, 4), V_T, src * 7168 + h * 4096))
        e('s_waitcnt lgkmcnt(0)')
        for h in range(2):
            b = R + h * 16
            for rp in range(2):
                e('v_pk_add_f32 %s, %s, %s' % (vr(b + 2 * rp, 2), vr(b + 2 * rp, 2), vr(b + 4 + 2 * rp, 2)))
                e('v_pk_add_f32 %s, %s, %s' % (vr(b + 8 + 2 * rp, 2), vr(b + 8 + 2 * rp, 2), vr(b + 12 + 2 * rp, 2)))
                e('v_pk_add_f32 %s, %s, %s' % (vr(b + 2 * rp, 2), vr(b + 2 * rp, 2), vr(b + 8 + 2 * rp, 2)))
        e('s_mul_i32 s%d, s%d, %d' % (T1, S_IT, KVACC))
        e('s_mul_i32 s%d, s%d, 7168' % (T2, S_P))
        e('s_add_u32 s%d, s%d, s%d' % (T1, T1, T2))
        e('s_add_u32 s%d, s%d, %d' % (T1, T1, OFF_KV))
        e('s_mov_b32 s%d, s%d' % (T5, T1))
        e('s_add_u32 s%d, s%d, s%d' % (T1, T1, T0))
        e('v_lshlrev_b32 v%d, 2, v%d' % (V_T + 1, V_LANE))
        for r in range(4):
            e('buffer_atomic_add_f32 v%d, v%d, %s, s%d offen offset:%d' % (R + r, V_T + 1, SRD_WS, T1, r * 256))
        lab = a.newlabel('kv_skip')
        e('s_cmp_eq_u32 s%d, 3' % S_WAVE)
        e('s_cbranch_scc1 %s' % lab)
        e('s_add_u32 s%d, s%d, 4096' % (T1, T1))
        for r in range(4):
            e('buffer_atomic_add_f32 v%d, v%d, %s, s%d offen offset:%d' % (R + 16 + r, V_T + 1, SRD_WS, T1, r * 256))
        a.label(lab)
        e('s_mov_b32 s%d, s%d' % (66, T5))
        self.signal(S_COLC)
        self.gemm_pass(0, [5, 6, 7], [0, 1, 2], [1] * 3, False)
        CS4 = V_T + 4
        self.read_cs_trans(0, [5, 6, 7], CS4)
        e('s_waitcnt lgkmcnt(0)')
        QP = V_T + 16
        for tt in range(2):
            for ft in range(3):
                self.fold_trans(acc(ft, tt), tt, CS4 + 4 * ft, S_EPS)
                self.phi(acc(ft, tt))
                self.pack4(QP + (ft * 2 + tt) * 2, acc(ft, tt))
        QF = V_T + 28
        for tt in range(2):
            for h in range(2):
                d = QF + (h * 2 + tt) * 4
                s0 = QP + (h * 2 + tt) * 2
                s2 = QP + (2 * 2 + tt) * 2
                e('v_mov_b32 v%d, v%d' % (d, s0))
                e('v_mov_b32 v%d, v%d' % (d + 1, s0 + 1))
                e('v_cndmask_b32_e64 v%d, 0, v%d, %s' % (d + 2, s2, S_G1 if h else S_G0))
                e('v_cndmask_b32_e64 v%d, 0, v%d, %s' % (d + 3, s2 + 1, S_G1 if h else S_G0))
        e('s_add_u32 s%d, s%d, 1' % (T4, S_IT))
        e('s_lshl_b32 s%d, s%d, 4' % (T4, T4))
        self.wait_cnt(S_COLC, 's%d' % T4)
        e('v_lshlrev_b32 v%d, 2, v%d' % (V_T + 1, V_LANE))
        KV = V_ACC
        e('s_mov_b32 s%d, s66' % T1)
        for n in range(7):
            if n == 4:
                e('s_add_u32 s%d, s%d, 4096' % (T1, T1))
            for r in range(4):
                e('buffer_load_dword v%d, v%d, %s, s%d offen offset:%d sc1' % (KV + 4 * n + r, V_T + 1, SRD_WS, T1, (n % 4) * 1024 + r * 256))
        e('s_waitcnt vmcnt(0)')
        FA = V_ACC + 32
        for n, (x, y) in enumerate(((0, 1), (2, 3), (4, 6), (5, 6))):
            self.pack4(FA + 4 * n, KV + 4 * x)
            self.pack4(FA + 4 * n + 2, KV + 4 * y)
        OO = V_ACC
        for tt in range(2):
            for n in range(4):
                h = n & 1
                e('v_mfma_f32_16x16x32_bf16 %s, %s, %s, 0' % (vr(OO + (tt * 4 + n) * 4, 4), vr(FA + 4 * n, 4), vr(QF + (h * 2 + tt) * 4, 4)))
        e('s_mul_i32 s%d, s%d, %d' % (T0, S_L, FMSZ))
        e('s_lshl_b32 s%d, s%d, 3' % (T1, S_R))
        e('s_lshl_b32 s%d, s%d, 1' % (T2, S_WAVE))
        e('s_add_u32 s%d, s%d, s%d' % (T1, T1, T2))
        e('s_mul_i32 s%d, s%d, 20480' % (T1, T1))
        e('s_add_u32 s%d, s%d, s%d' % (T0, T0, T1))
        e('s_add_u32 s%d, s%d, %d' % (T0, T0, OFF_O))
        e('s_lshl_b32 s%d, s%d, 10' % (T1, S_P))
        e('s_add_u32 s%d, s%d, s%d' % (T1, T0, T1))
        e('s_lshr_b32 s%d, s%d, 2' % (T2, S_P))
        e('s_add_u32 s%d, s%d, 16' % (T2, T2))
        e('s_lshl_b32 s%d, s%d, 10' % (T2, T2))
        e('s_add_u32 s%d, s%d, s%d' % (T2, T0, T2))
        e('s_and_b32 s%d, s%d, 3' % (T3, S_P))
        e('s_lshl_b32 s%d, s%d, 8' % (T3, T3))
        e('s_add_u32 s%d, s%d, s%d' % (T2, T2, T3))
        LO = V_T + 1
        e('v_and_b32 v%d, 1, v%d' % (LO, V_G))
        e('v_lshlrev_b32 v%d, 3, v%d' % (LO, LO))
        e('v_lshl_add_u32 v%d, v%d, 4, v%d' % (LO, V_I, LO))
        for tt in range(2):
            O0, O1, U0, U1 = (OO + (tt * 4 + n) * 4 for n in range(4))
            D0, D1 = V_T + 4, V_T + 6
            for (U, Dn) in ((U0, D0), (U1, D1)):
                e('v_mov_b32 v%d, v%d' % (Dn, U))
                e('v_mov_b32 v%d, v%d' % (Dn + 1, U))
                e('v_permlane32_swap_b32 v%d, v%d' % (Dn, Dn + 1))
                e('v_add_f32 v%d, s50, v%d' % (Dn, Dn))
                e('v_rcp_f32 v%d, v%d' % (Dn, Dn))
            for (O, Dn) in ((O0, D0), (O1, D1), (U0, D0), (U1, D1)):
                for rp in range(2):
                    e('v_pk_mul_f32 %s, %s, %s op_sel_hi:[1,0]' % (vr(O + 2 * rp, 2), vr(O + 2 * rp, 2), vr(Dn, 2)))
            M = V_T + 8
            self.pack4(M, O0)
            self.pack4(M + 2, O1)
            e('buffer_store_dwordx4 %s, v%d, %s, s%d offen sc1' % (vr(M, 4), V_L16, SRD_WS, T1))
            for r in range(4):
                e('v_cndmask_b32_e64 v%d, v%d, v%d, %s' % (U0 + r, U1 + r, U0 + r, S_G2))
            M2 = V_T + 12 + 2 * tt
            self.pack4(M2, U0)
            e('s_mov_b64 exec, %s' % S_HI)
            e('buffer_store_dwordx2 %s, v%d, %s, s%d offen sc1' % (vr(M2, 2), LO, SRD_WS, T2))
            e('s_mov_b64 exec, -1')
            if tt == 0:
                e('s_add_u32 s%d, s%d, 20480' % (T1, T1))
                e('s_add_u32 s%d, s%d, 20480' % (T2, T2))
                e('s_nop 1')
        self.signal(S_ROWC)
        e('s_add_u32 s%d, s%d, 16' % (S_ROWT, S_ROWT))

    def o_phase(self, m, final_possible):
        a, e = self.a, self.e
        e('s_mul_i32 s%d, s%d, %d' % (T4, S_C, WOTILE))
        e('s_add_u32 s%d, s%d, %d' % (T4, T4, OFF_WOB if m else OFF_WOA))
        self.dma_linear(100, T4, 0)
        self.wait_cnt(S_ROWC, 's%d' % S_ROWT)
        e('s_lshl_b32 s%d, s%d, 3' % (T1, S_R))
        e('s_lshl_b32 s%d, s%d, 2' % (T2, S_HH))
        e('s_add_u32 s%d, s%d, s%d' % (T1, T1, T2))
        e('s_add_u32 s%d, s%d, s%d' % (T1, T1, S_WAVE))
        e('s_mov_b32 s67, s%d' % T1)
        e('s_mul_i32 s%d, s%d, 20480' % (T1, T1))
        e('s_mul_i32 s%d, s%d, %d' % (T0, S_L, FMSZ))
        e('s_add_u32 s%d, s%d, s%d' % (T0, T0, T1))
        e('s_add_u32 s%d, s%d, %d' % (T0, T0, OFF_O))
        for ks in range(20):
            if ks and ks % 4 == 0:
                e('s_add_u32 s%d, s%d, 4096' % (T0, T0))
            e('buffer_load_dwordx4 %s, v%d, %s, s%d offen offset:%d sc1' % (ar(ks * 4, 4), V_L16, SRD_WS, T0, (ks % 4) * 1024))
        steps = [(ks, t) for ks in range(20) for t in range(5)]

        def issue(idx):
            ks, t = steps[idx]
            v, imm = lds_addr(ks * 5120 + t * 1024)
            e('ds_read_b128 %s, v%d offset:%d' % (vr(V_RING + (idx % NRING) * 4, 4), v, imm))
        pre = NRING - 1
        for i in range(pre):
            issue(i)
        for idx, (ks, t) in enumerate(steps):
            if idx + pre < len(steps):
                issue(idx + pre)
                e('s_waitcnt lgkmcnt(%d)' % pre)
            else:
                e('s_waitcnt lgkmcnt(%d)' % (len(steps) - 1 - idx))
            if t == 0:
                e('s_waitcnt vmcnt(%d)' % (19 - ks))
            d = vr(V_ACC + 4 * t, 4)
            e('v_mfma_f32_16x16x32_bf16 %s, %s, %s, %s' % (d, vr(V_RING + (idx % NRING) * 4, 4), ar(ks * 4, 4), '0' if ks == 0 else d))
        P = V_T + 4
        for k in range(10):
            e('v_pk_add_f32 %s, %s, %s' % (vr(V_ACC + 2 * k, 2), vr(V_ACC + 2 * k, 2), vr(V_XRES + 2 * k, 2)))
        for k in range(10):
            e('v_cvt_pk_bf16_f32 v%d, v%d, v%d' % (P + k, V_ACC + 2 * k, V_ACC + 2 * k + 1))
        for k in range(10):
            e('v_lshlrev_b32 v%d, 16, v%d' % (V_XRES + 2 * k, P + k))
            e('v_and_b32 v%d, 0xffff0000, v%d' % (V_XRES + 2 * k + 1, P + k))
        fin = a.newlabel('o_final')
        done = a.newlabel('o_done')
        if final_possible:
            e('s_cmp_eq_u32 s%d, 1' % S_IT)
            e('s_cbranch_scc1 %s' % fin)
        SS = V_T + 16
        e('v_pk_add_f32 %s, %s, %s' % (vr(SS, 2), vr(V_XRES, 2), vr(V_XRES + 2, 2)))
        e('v_pk_mul_f32 %s, %s, %s' % (vr(SS + 2, 2), vr(V_XRES, 2), vr(V_XRES, 2)))
        e('v_pk_fma_f32 %s, %s, %s, %s' % (vr(SS + 2, 2), vr(V_XRES + 2, 2), vr(V_XRES + 2, 2), vr(SS + 2, 2)))
        for k in range(2, 10):
            e('v_pk_add_f32 %s, %s, %s' % (vr(SS, 2), vr(SS, 2), vr(V_XRES + 2 * k, 2)))
            e('v_pk_fma_f32 %s, %s, %s, %s' % (vr(SS + 2, 2), vr(V_XRES + 2 * k, 2), vr(V_XRES + 2 * k, 2), vr(SS + 2, 2)))
        e('v_add_f32 v%d, v%d, v%d' % (SS, SS, SS + 1))
        e('v_add_f32 v%d, v%d, v%d' % (SS + 1, SS + 2, SS + 3))
        for x in (SS, SS + 1):
            e('v_mov_b32 v%d, v%d' % (SS + 4, x))
            e('v_permlane32_swap_b32 v%d, v%d' % (x, SS + 4))
            e('v_add_f32 v%d, v%d, v%d' % (x, x, SS + 4))
            e('v_mov_b32 v%d, v%d' % (SS + 4, x))
            e('v_permlane16_swap_b32 v%d, v%d' % (x, SS + 4))
            e('v_add_f32 v%d, v%d, v%d' % (x, x, SS + 4))
        e('s_add_u32 s%d, s%d, 1' % (T3, S_L))
        e('s_mul_i32 s%d, s%d, %d' % (T0, T3, FMSZ))
        e('s_mul_i32 s%d, s67, 20480' % T1)
        e('s_add_u32 s%d, s%d, s%d' % (T0, T0, T1))
        e('s_add_u32 s%d, s%d, %d' % (T0, T0, OFF_X))
        e('s_lshl_b32 s%d, s%d, 11' % (T1, S_C))
        e('s_add_u32 s%d, s%d, s%d' % (T1, T0, T1))
        e('buffer_store_dwordx4 %s, v%d, %s, s%d offen sc1' % (vr(P, 4), V_L16, SRD_WS, T1))
        e('buffer_store_dwordx4 %s, v%d, %s, s%d offen offset:1024 sc1' % (vr(P + 4, 4), V_L16, SRD_WS, T1))
        e('s_lshr_b32 s%d, s%d, 1' % (T1, S_C))
        e('s_add_u32 s%d, s%d, 16' % (T1, T1))
        e('s_lshl_b32 s%d, s%d, 10' % (T1, T1))
        e('s_add_u32 s%d, s%d, s%d' % (T1, T0, T1))
        e('s_and_b32 s%d, s%d, 1' % (T2, S_C))
        e('s_lshl_b32 s%d, s%d, 9' % (T2, T2))
        e('s_add_u32 s%d, s%d, s%d' % (T1, T1, T2))
        LO = V_T + 1
        e('v_lshrrev_b32 v%d, 1, v%d' % (LO, V_G))
        e('v_lshlrev_b32 v%d, 8, v%d' % (LO, LO))
        e('v_lshl_add_u32 v%d, v%d, 4, v%d' % (LO, V_I, LO))
        e('v_and_b32 v%d, 1, v%d' % (LO + 1, V_G))
        e('v_lshl_add_u32 v%d, v%d, 3, v%d' % (LO, LO + 1, LO))
        e('buffer_store_dwordx2 %s, v%d, %s, s%d offen sc1' % (vr(P + 8, 2), LO, SRD_WS, T1))
        e('s_mul_i32 s%d, s%d, %d' % (T0, T3, STSZ))
        e('s_lshl_b32 s%d, s67, 10' % T1)
        e('s_add_u32 s%d, s%d, s%d' % (T0, T0, T1))
        e('s_lshl_b32 s%d, s%d, 3' % (T1, S_C))
        e('s_add_u32 s%d, s%d, s%d' % (T0, T0, T1))
        e('s_add_u32 s%d, s%d, %d' % (T0, T0, OFF_ST))
        e('v_lshlrev_b32 v%d, 6, v%d' % (LO, V_I))
        e('s_mov_b64 exec, %s' % S_G0)
        e('buffer_store_dwordx2 %s, v%d, %s, s%d offen sc1' % (vr(SS, 2), LO, SRD_WS, T0))
        e('s_mov_b64 exec, -1')
        self.signal(S_ROWC)
        e('s_add_u32 s%d, s%d, 16' % (S_ROWT, S_ROWT))
        if final_possible:
            e('s_branch %s' % done)
            a.label(fin)
            e('s_mul_i32 s%d, s67, %d' % (T0, 16 * 1280))
            e('s_mul_i32 s%d, s%d, 160' % (T1, S_C))
            e('s_add_u32 s%d, s%d, s%d' % (T0, T0, T1))
            e('v_mul_u32_u24 v%d, 1280, v%d' % (V_T + 1, V_I))
            e('v_lshl_add_u32 v%d, v%d, 4, v%d' % (V_T + 2, V_G, V_T + 1))
            e('v_lshl_add_u32 v%d, v%d, 3, v%d' % (V_T + 3, V_G, V_T + 1))
            e('buffer_store_dwordx4 %s, v%d, %s, s%d offen' % (vr(P, 4), V_T + 2, SRD_OUT, T0))
            e('buffer_store_dwordx4 %s, v%d, %s, s%d offen offset:64' % (vr(P + 4, 4), V_T + 2, SRD_OUT, T0))
            e('buffer_store_dwordx2 %s, v%d, %s, s%d offen offset:128' % (vr(P + 8, 2), V_T + 3, SRD_OUT, T0))
            e('s_endpgm')
            a.label(done)


def gen_main(a, opts):
    M = Main(a, opts)
    e = a.e
    M.prologue()
    a.label('MAIN_loop')
    M.layer_a()
    if M.end_if('A'):
        a.label('MAIN_end'); e('s_endpgm'); return
    M.o_phase(0, False)
    if M.end_if('O0'):
        a.label('MAIN_end'); e('s_endpgm'); return
    import kattn
    kattn.layer_b(M)
    if M.end_if('B'):
        a.label('MAIN_end'); e('s_endpgm'); return
    M.o_phase(1, True)
    if M.end_if('O1'):
        a.label('MAIN_end'); e('s_endpgm'); return
    e('s_add_u32 s%d, s%d, 1' % (S_IT, S_IT))
    e('s_branch MAIN_loop')
    a.label('MAIN_end')
    e('s_endpgm')
```

```python
S, D, H, DH = 2048, 640, 32, 20

WTILE = 153600
WOTILE = 102400
OFF_WA = 0
OFF_WB = OFF_WA + 16 * WTILE
OFF_WOA = OFF_WB + 16 * WTILE
OFF_WOB = OFF_WOA + 8 * WOTILE
OFF_CS = OFF_WOB + 8 * WOTILE
CS_M = 20 * 16 * 128 * 4
FMSZ = 2048 * 640 * 2
OFF_X = OFF_CS + 2 * CS_M
OFF_O = OFF_X + 4 * FMSZ
OFF_ST = OFF_O + 4 * FMSZ
STSZ = 2048 * 64
OFF_ZERO = OFF_ST + 4 * STSZ
KVACC = 16 * 7 * 1024
OFF_KV = OFF_ZERO
OFF_CNT = OFF_KV + 2 * KVACC
CNTSZ = 16384
ZEROSZ = 2 * KVACC + CNTSZ
assert ZEROSZ == 64 * 3840
OFF_HALO = OFF_ZERO + ZEROSZ
HALOBLK = 28672
HALOSZ = 256 * HALOBLK
WS_USED = OFF_HALO + 2 * HALOSZ
CNT_ROW = 0
CNT_COL = 16 * 128
CNT_KVF = 32 * 128
CNT_ERR = 100 * 128


def xchunk(ks, g):
    if ks < 16:
        return 10 * (ks >> 1) + 4 * (ks & 1) + g
    return 20 * (ks - 16) + 10 * (g >> 1) + 8 + (g & 1)


def xfeat(ks, g, j):
    return 8 * xchunk(ks, g) + j


def ofeat(ks, g, j):
    if ks < 16:
        base = 40 * ks + 4 * g
    else:
        base = 40 * (4 * (ks - 16) + g) + 16
    return base + j + (16 if j >= 4 else 0)


def wcol(m, p, t, i):
    b = 40 * p
    Q, K, V = 0, 640, 1280

    def left(sec_lo, sec_hi):
        if i < 4:
            return sec_lo + b + 16 + i
        if i < 8:
            return sec_lo + b + 36 + (i - 4)
        if sec_hi is None:
            return None
        if i < 12:
            return sec_hi + b + 16 + (i - 8)
        return sec_hi + b + 36 + (i - 12)
    if m == 0:
        return [K + b + i, K + b + 20 + i, V + b + i, V + b + 20 + i, left(K, V),
                Q + b + i, Q + b + 20 + i, left(Q, None)][t]
    return [K + b + i, K + b + 20 + i, left(K, Q), V + b + i, V + b + 20 + i, left(V, None),
            Q + b + i, Q + b + 20 + i][t]


def wfrag_off(m, ks, t):
    if m == 0:
        if t < 5:
            return ks * 5120 + t * 1024
        return 102400 + ks * 2560 + (t - 5) * 1024
    if t < 6:
        return ks * 5632 + t * 1024
    return 112640 + ks * 2048 + (t - 6) * 1024


def w_is_half(m, t):
    return (m == 0 and t == 7) or (m == 1 and t == 5)


def wocol(c, t, i):
    b = 80 * c
    if t < 4:
        return b + 32 * (t >> 1) + 8 * (i >> 2) + 4 * (t & 1) + (i & 3)
    return b + 64 + i
```

```python
import sys, os
sys.path.insert(0, os.path.dirname(os.path.abspath(__file__)))
from asmlib import *
from layout import *
import k0

HEADER = '''; Kernarg layout (72 bytes, ptrs only, base s[0:1]):
'''


def build(kernels, opts=None):
    txt = HEADER
    for name, gen, desc, grid, block, lds in kernels:
        txt += '; @launch kernel=%s grid=(%d,1,1) block=(%d,1,1) lds=%d\n' % (name, grid, block, lds)
    txt += '.amdgcn_target "amdgcn-amd-amdhsa--gfx950"\n.text\n'
    seen = set()
    descs = ''
    for name, gen, desc, grid, block, lds in kernels:
        if name in seen:
            continue
        seen.add(name)
        a = Asm()
        gen(a)
        body, problems = a.finalize()
        for p in problems[:40]:
            print('WAITCNT-CHECK[%s]: %s' % (name, p), file=sys.stderr)
        txt += body
        descs += '.p2align 6\n' + desc
    txt += '.section .rodata,"a"\n' + descs
    return txt


if __name__ == '__main__':
    mode = sys.argv[1] if len(sys.argv) > 1 else 'k0'
    out = sys.argv[2] if len(sys.argv) > 2 else 'out.s'
    ks = [('prep_kernel', k0.gen_k0, k0.K0_DESC, 256, 256, k0.K0_LDS)]
    if mode != 'k0':
        import kmain
        opts = dict(kv.split('=') for kv in sys.argv[3:])
        ks.append(('main_kernel', lambda a: kmain.gen_main(a, opts), kmain.DESC, 256, 256, kmain.LDS))
    open(out, 'w').write(build(ks))
    print('wrote', out)
```
